```python
import torch

def _softmax(x, axis=-1):
    return torch.softmax(x, dim=axis)

def _gelu(x):
    return torch.nn.functional.gelu(x, approximate='tanh')

def _silu(x):
    return torch.nn.functional.silu(x)

def _sigmoid(x):
    return torch.sigmoid(x)

def _layernorm(x, axis=-1, eps=1e-05):
    m = x.mean(dim=axis, keepdim=True)
    v = x.var(dim=axis, keepdim=True, unbiased=False)
    return (x - m) / torch.sqrt(v + eps)

def _scatter_add(tgt, idx, src, axis=0):
    return tgt.clone().index_add_(axis, idx, src)

def _segment_sum(src, seg, n):
    out = torch.zeros((n,) + src.shape[1:], dtype=src.dtype)
    return out.index_add_(0, seg, src)

def _pad(x, pw):
    flat = tuple((v for pair in reversed(pw) for v in pair))
    return torch.nn.functional.pad(x, flat)
kernel_name = 'adaLN_cond__linear_kernel_hedgehog__glu_gated_geglu__prompt'

def setup_inputs():

    _w = lambda a: (lambda t: t.to(torch.bfloat16) if t.is_floating_point() else t)(torch.as_tensor(a))

    def _A_setup():
        B, S, D, H = (1, 2048, 512, 32)
        Dh = D // H
        return {'x': _w((lambda *s: torch.randn(*s, dtype=torch.bfloat16) * 0.1)(B, S, D)), 'wqkv': _w((lambda *s: torch.randn(*s, dtype=torch.bfloat16) * 0.2)(D, 3 * D)), 'w_phi': _w((lambda *s: torch.randn(*s, dtype=torch.bfloat16) * 0.2)(H, Dh, Dh) * Dh ** (-0.5)), 'wo': _w((lambda *s: torch.randn(*s, dtype=torch.bfloat16) * 0.2)(D, D))}
    _A_in = _A_setup()

    def _B_setup():
        B, S, Dm, Df = (1, 2048, 512, 1376)
        return {'x': _w((lambda *s: torch.randn(*s, dtype=torch.bfloat16) * 0.1)(B, S, Dm)), 'w_gate': _w((lambda *s: torch.randn(*s, dtype=torch.bfloat16) * 3.2)(Dm, Df) * Dm ** (-0.5)), 'w_up': _w((lambda *s: torch.randn(*s, dtype=torch.bfloat16) * 3.2)(Dm, Df) * Dm ** (-0.5)), 'w_down': _w((lambda *s: torch.randn(*s, dtype=torch.bfloat16) * 3.2)(Df, Dm) * Df ** (-0.5))}
    _B_in = _B_setup()
    return {'A_x': _A_in['x'], 'A_wqkv': _A_in['wqkv'], 'A_w_phi': _A_in['w_phi'], 'A_wo': _A_in['wo'], 'B_x': _B_in['x'], 'B_w_gate': _B_in['w_gate'], 'B_w_up': _B_in['w_up'], 'B_w_down': _B_in['w_down'], 'c': _w((lambda *s: torch.randn(*s, dtype=torch.bfloat16) * 0.4)(1, 512) * 8.0), 'w_mod': _w((lambda *s: torch.randn(*s, dtype=torch.bfloat16) * 0.4)(512, 6 * 512) * 512 ** (-0.5) * 8.0)}

def reference(A_x, A_wqkv, A_w_phi, A_wo, B_x, B_w_gate, B_w_up, B_w_down, c, w_mod):

    def _A_ref(x, wqkv, w_phi, wo):
        B, S, D = x.shape
        H = 32
        Dh = D // H
        qkv = (lambda x, *d: x.permute(*d))((x @ wqkv).reshape(B, S, 3, H, Dh), 2, 0, 3, 1, 4)
        q, k, v = (qkv[0], qkv[1], qkv[2])
        pq = torch.einsum('bhsd,hdf->bhsf', q, w_phi)
        pk = torch.einsum('bhsd,hdf->bhsf', k, w_phi)
        phi_q = torch.concatenate([_softmax(pq, axis=-1), _softmax(-pq, axis=-1)], axis=-1)
        phi_k = torch.concatenate([_softmax(pk, axis=-1), _softmax(-pk, axis=-1)], axis=-1)
        kv = torch.einsum('bhsf,bhsd->bhfd', phi_k, v)
        z = torch.einsum('bhsf->bhf', phi_k)
        num = torch.einsum('bhqf,bhfd->bhqd', phi_q, kv)
        den = torch.einsum('bhqf,bhf->bhq', phi_q, z)[..., None] + 1e-06
        o = num / den
        return (lambda x, *d: x.permute(*d))(o, 0, 2, 1, 3).reshape(B, S, D) @ wo

    def _B_ref(x, w_gate, w_up, w_down):
        g = torch.einsum('bsd,df->bsf', x, w_gate)
        u = torch.einsum('bsd,df->bsf', x, w_up)
        h = _gelu(g) * u
        return torch.einsum('bsf,fd->bsd', h, w_down)
    x = A_x
    mod = (_silu(c) @ w_mod).reshape(c.shape[0], 6, 1, -1)
    sa, ca, ga, sb, cb, gb = (mod[:, 0].clone(), mod[:, 1].clone(), mod[:, 2].clone(), mod[:, 3].clone(), mod[:, 4].clone(), mod[:, 5].clone())
    h = _layernorm(x, axis=-1) * (1 + ca) + sa
    x = x + ga * _A_ref(h, A_wqkv, A_w_phi, A_wo)
    h = _layernorm(x, axis=-1) * (1 + cb) + sb
    x = x + gb * _B_ref(h, B_w_gate, B_w_up, B_w_down)
    return x
```

```python
import re

_REG = re.compile(r'^(v|a|s)(\d+)$')
_RNG = re.compile(r'^(v|a|s)\[(\d+):(\d+)\]$')
TRANS = ('v_exp_f32', 'v_log_f32', 'v_rcp_f32', 'v_rsq_f32', 'v_sqrt_f32', 'v_sin_f32', 'v_cos_f32')


def regs_of(tok):
    tok = tok.strip()
    if tok.startswith('-'):
        tok = tok[1:]
    if tok.startswith('|') and tok.endswith('|'):
        tok = tok[1:-1]
    if tok.startswith('abs(') and tok.endswith(')'):
        tok = tok[4:-1]
    m = _REG.match(tok)
    if m:
        return [(m.group(1), int(m.group(2)))]
    m = _RNG.match(tok)
    if m:
        return [(m.group(1), i) for i in range(int(m.group(2)), int(m.group(3)) + 1)]
    if tok == 'vcc':
        return [('s', 'vcc')]
    if tok == 'm0':
        return [('s', 'm0')]
    if tok == 'exec':
        return [('s', 'exec')]
    return []


def split_ops(s):
    out, depth, cur = [], 0, ''
    for ch in s:
        if ch == '[':
            depth += 1
        if ch == ']':
            depth -= 1
        if ch == ',' and depth == 0:
            out.append(cur.strip())
            cur = ''
        else:
            cur += ch
    if cur.strip():
        out.append(cur.strip())
    return out


class Ins:
    __slots__ = ('text', 'mn', 'kind', 'dst', 'src', 'ws', 'srcC', 'wide_store', 'is_dpp', 'is_perm', 'is_trans', 'lds_dma', 'passes')


def parse(text):
    t = text.split(';')[0].strip()
    parts = t.split(None, 1)
    mn = parts[0]
    rest = parts[1] if len(parts) > 1 else ''
    i = Ins()
    i.text, i.mn = text, mn
    i.ws = 1
    i.srcC = None
    i.wide_store = False
    i.is_dpp = ('quad_perm' in rest) or ('row_' in rest)
    i.is_perm = mn.startswith('v_permlane')
    i.is_trans = mn.replace('_e32', '').replace('_e64', '') in TRANS
    i.lds_dma = False
    i.passes = 0
    ops = split_ops(rest)
    if ops:
        last = ops[-1].split()
        ops[-1] = last[0] if last else ''
        mods = last[1:]
    else:
        mods = []
    if mn.startswith('v_mfma'):
        i.kind = 'mfma'
        i.passes = 8 if '32x32' in mn else 4
    elif mn.startswith('v_'):
        i.kind = 'valu'
    elif mn.startswith('buffer_') or mn.startswith('global_'):
        i.kind = 'vmem'
    elif mn.startswith('ds_'):
        i.kind = 'ds'
    else:
        i.kind = 'salu'
    R = [regs_of(o) for o in ops]
    flat = lambda L: [x for l in L for x in l]
    dst, src = [], []
    if mn == 's_nop':
        i.ws = int(ops[0], 0) + 1
    elif i.kind == 'vmem':
        if 'lds' in mods:
            i.lds_dma = True
            src = flat(R) + [('s', 'm0')]
        elif '_store' in mn or ('atomic' in mn and 'sc0' not in mods):
            src = flat(R)
            if mn.endswith('x3') or mn.endswith('x4'):
                i.wide_store = True
        else:
            dst, src = R[0], flat(R[1:])
            if 'd16' in mn:
                src = src + R[0]
    elif i.kind == 'ds':
        if mn.startswith('ds_write'):
            src = flat(R)
        else:
            dst, src = R[0], flat(R[1:])
    elif i.kind == 'mfma':
        dst, src = R[0], flat(R[1:])
        i.srcC = R[3]
    elif i.kind == 'valu':
        if i.is_perm:
            dst = flat(R)
            src = flat(R)
        elif mn.startswith('v_add_co') or mn.startswith('v_sub_co') or mn.startswith('v_addc_co'):
            dst, src = R[0] + R[1], flat(R[2:])
        else:
            dst, src = R[0], flat(R[1:])
            if mn.startswith('v_fmac') or mn.startswith('v_dot2c') or mn.startswith('v_pk_fmac'):
                src = src + R[0]
            if mn.startswith('v_cmp') and not mn.startswith('v_cmpx') and not R[0]:
                dst = [('s', 'vcc')]
    else:
        if mn.startswith('s_cmp') or mn in ('s_waitcnt', 's_barrier', 's_endpgm', 's_setprio', 's_sleep') or mn.startswith('s_cbranch') or mn == 's_branch':
            src = flat(R)
        elif R:
            dst, src = R[0], flat(R[1:])
    i.dst, i.src = dst, src
    return i


def need(p, c):
    n = 0
    pd, ps = set(p.dst), set(p.src)
    cd, cs = set(c.dst), set(c.src)
    vec = lambda S: {x for x in S if x[0] in 'va'}
    sc = lambda S: {x for x in S if x[0] == 's'}
    if p.kind == 'valu':
        if c.kind == 'mfma' and vec(pd) & cs:
            n = max(n, 2)
        if (c.is_perm or c.is_dpp) and vec(pd) & cs:
            n = max(n, 2)
        if p.is_trans and c.kind == 'valu' and not c.is_trans and vec(pd) & (cs | cd):
            n = max(n, 1)
        if c.mn.startswith('v_readfirstlane') or c.mn.startswith('v_readlane'):
            if vec(pd) & cs:
                n = max(n, 1)
        if sc(pd):
            if c.kind == 'valu' and sc(pd) & cs:
                n = max(n, 4 if 'lane' in c.mn else 2)
            if c.kind == 'vmem' and sc(pd) & cs:
                n = max(n, 5)
            if c.kind == 'salu' and sc(pd) & cs:
                n = max(n, 1)
    if p.kind == 'mfma':
        big = 8 if p.passes == 4 else 12
        if c.kind == 'mfma' and c.srcC is not None and c.srcC == p.dst and not (pd & (set(c.src) - set(c.srcC))):
            pass
        elif pd & (cs | cd):
            n = max(n, big)
        if p.srcC and c.kind == 'valu' and set(p.srcC) & cd:
            n = max(n, 3 if p.passes == 4 else 7)
    if p.kind == 'salu' and ('s', 'm0') in pd and c.lds_dma:
        n = max(n, 1)
    if p.wide_store and vec(ps) & cd:
        n = max(n, 2)
    return n


class Asm:
    def __init__(self):
        self.lines = []
        self.hist = []

    def raw(self, s):
        self.lines.append(s)

    def label(self, name):
        self.lines.append(name + ':')

    def fence(self):
        self.hist = []

    def __call__(self, text):
        for line in text.strip().split('\n'):
            line = line.strip()
            if not line or line.startswith(';'):
                continue
            self.emit(line)

    def emit(self, text):
        c = parse(text)
        dist = 0
        req = 0
        for p in reversed(self.hist):
            k = need(p, c)
            if k > dist:
                req = max(req, k - dist)
            dist += p.ws
            if dist >= 13:
                break
        while req > 0:
            k = min(req, 16)
            nop = parse('s_nop %d' % (k - 1))
            self.lines.append('    s_nop %d' % (k - 1))
            self.hist.append(nop)
            req -= k
        self.lines.append('    ' + text)
        self.hist.append(c)
        if len(self.hist) > 40:
            self.hist = self.hist[-40:]

    def text(self):
        return '\n'.join(self.lines) + '\n'


def v(i, n=1):
    return 'v%d' % i if n == 1 else 'v[%d:%d]' % (i, i + n - 1)


def a(i, n=1):
    return 'a%d' % i if n == 1 else 'a[%d:%d]' % (i, i + n - 1)


def s(i, n=1):
    return 's%d' % i if n == 1 else 's[%d:%d]' % (i, i + n - 1)
```

```python
from asmlib import *

WS_XH = 0x000000
WS_X1 = 0x200000
WS_PHIQ = 0x400000
WS_HH = 0x800000
WS_MODF = 0xE00000
WS_KVACC = 0xE10000
WS_ZACC = 0xE20000
WS_STATS = 0xE30000

KA = dict(x=0, wqkv=8, wphi=16, wo=24, bx=32, wgate=40, wup=48, wdown=56, c=64, wmod=72, out=80, dbg=88, ws=96)

LOG2E = 0x3FB8AA3B


def srd(A, sd, sptr, nbytes, off=0):
    if off:
        A('s_add_u32 %s, %s, 0x%x' % (s(sd), s(sptr), off))
        A('s_addc_u32 %s, %s, 0' % (s(sd + 1), s(sptr + 1)))
    else:
        A('s_mov_b32 %s, %s' % (s(sd), s(sptr)))
        A('s_mov_b32 %s, %s' % (s(sd + 1), s(sptr + 1)))
    A('s_mov_b32 %s, 0x%x' % (s(sd + 2), nbytes))
    A('s_mov_b32 %s, 0x00020000' % s(sd + 3))


def kernel_begin(A, name):
    A.raw('.globl %s' % name)
    A.raw('.p2align 8')
    A.raw('.type %s,@function' % name)
    A.raw('%s:' % name)
    A.fence()


def kernel_desc(name, vgpr, sgpr, accum):
    return '''.amdhsa_kernel %s
  .amdhsa_next_free_vgpr %d
  .amdhsa_next_free_sgpr %d
  .amdhsa_accum_offset %d
  .amdhsa_group_segment_fixed_size 0
  .amdhsa_kernarg_size 104
  .amdhsa_user_sgpr_count 2
  .amdhsa_user_sgpr_kernarg_segment_ptr 1
  .amdhsa_system_sgpr_workgroup_id_x 1
.end_amdhsa_kernel
''' % (name, vgpr, sgpr, accum)


def bf16r(A, d, x):
    A('v_cvt_pk_bf16_f32 %s, %s, %s' % (v(d), v(x), v(x)))
    A('v_lshlrev_b32 %s, 16, %s' % (v(d), v(d)))


def unpack(A, lo, hi, src):
    A('v_lshlrev_b32 %s, 16, %s' % (v(lo), v(src)))
    A('v_and_b32 %s, 0xffff0000, %s' % (v(hi), v(src)))


def wave_allreduce(A, x, t, op='v_add_f32'):
    A('%s_dpp %s, %s, %s quad_perm:[1,0,3,2] row_mask:0xf bank_mask:0xf' % (op, v(t), v(x), v(x)))
    A('%s_dpp %s, %s, %s quad_perm:[2,3,0,1] row_mask:0xf bank_mask:0xf' % (op, v(x), v(t), v(t)))
    A('%s_dpp %s, %s, %s row_half_mirror row_mask:0xf bank_mask:0xf' % (op, v(t), v(x), v(x)))
    A('%s_dpp %s, %s, %s row_mirror row_mask:0xf bank_mask:0xf' % (op, v(x), v(t), v(t)))
    group_allreduce(A, x, t, op)


def group_allreduce(A, x, t, op):
    A('v_mov_b32 %s, %s' % (v(t), v(x)))
    A('v_permlane16_swap_b32 %s, %s' % (v(t), v(x)))
    A('%s %s, %s, %s' % (op, v(x), v(t), v(x)))
    A('v_mov_b32 %s, %s' % (v(t), v(x)))
    A('v_permlane32_swap_b32 %s, %s' % (v(t), v(x)))
    A('%s %s, %s, %s' % (op, v(x), v(t), v(x)))


class VM:
    def __init__(self, A):
        self.A = A
        self.tags = []

    def issue(self, tag, n=1):
        self.tags += [tag] * n

    def wait(self, tag):
        idx = max(i for i, t in enumerate(self.tags) if t == tag)
        n = len(self.tags) - 1 - idx
        assert n <= 63, n
        self.A('s_waitcnt vmcnt(%d)' % n)
```

```python
from common import *


def gen_k0(A):
    name = 'k0_prep_kernel'
    kernel_begin(A, name)
    A('''
    s_cmp_ge_u32 s2, 352
    s_cbranch_scc1 K0_END
    s_load_dwordx2 s[4:5], s[0:1], 0
    s_load_dwordx4 s[8:11], s[0:1], 64
    s_load_dwordx2 s[6:7], s[0:1], 96
    s_waitcnt lgkmcnt(0)
    s_cmp_ge_u32 s2, 96
    s_cbranch_scc1 K0_XH
    ''')
    srd(A, 12, 8, 1024)
    srd(A, 16, 10, 512 * 6144)
    srd(A, 20, 6, 12288, WS_MODF)
    A('''
    v_and_b32 v1, 3, v0
    v_lshrrev_b32 v2, 2, v0
    v_lshlrev_b32 v3, 4, v2
    buffer_load_dwordx4 v[4:7], v3, s[12:15], 0 offen
    s_mov_b32 s24, 49152
    v_mul_lo_u32 v3, v2, s24
    v_lshl_add_u32 v3, v1, 4, v3
    s_lshl_b32 s25, s2, 6
    v_add_u32 v3, s25, v3
    ''')
    for i in range(8):
        A('s_mov_b32 s26, %d' % (i * 6144))
        A('buffer_load_dwordx4 %s, v3, s[16:19], s26 offen' % v(16 + 4 * i, 4))
    A('s_waitcnt vmcnt(8)')
    for d in range(4):
        unpack(A, 48 + 2 * d, 49 + 2 * d, 4 + d)
    A('s_mov_b32 s27, 0x%x' % (LOG2E | 0x80000000))
    for i in range(8):
        A('v_mul_f32 %s, s27, %s' % (v(56 + i), v(48 + i)))
    for i in range(8):
        A('v_exp_f32 %s, %s' % (v(56 + i), v(56 + i)))
    for i in range(8):
        A('v_add_f32 %s, 1.0, %s' % (v(56 + i), v(56 + i)))
    for i in range(8):
        A('v_rcp_f32 %s, %s' % (v(56 + i), v(56 + i)))
    for i in range(8):
        A('v_mul_f32 %s, %s, %s' % (v(48 + i), v(48 + i), v(56 + i)))
    for d in range(4):
        A('v_cvt_pk_bf16_f32 %s, %s, %s' % (v(56 + d), v(48 + 2 * d), v(49 + 2 * d)))
    for d in range(4):
        unpack(A, 48 + 2 * d, 49 + 2 * d, 56 + d)
    for j in range(8):
        A('v_mov_b32 %s, 0' % v(64 + j))
    for i in range(8):
        A('s_waitcnt vmcnt(%d)' % (7 - i))
        for d in range(4):
            unpack(A, 72 + 2 * d, 73 + 2 * d, 16 + 4 * i + d)
        for j in range(8):
            A('v_fmac_f32 %s, %s, %s' % (v(64 + j), v(48 + i), v(72 + j)))
    A('''
    v_lshlrev_b32 v3, 5, v0
    ds_write_b128 v3, v[64:67]
    ds_write_b128 v3, v[68:71] offset:16
    s_waitcnt lgkmcnt(0)
    s_barrier
    v_and_b32 v1, 31, v0
    v_lshrrev_b32 v2, 5, v0
    v_lshlrev_b32 v3, 10, v2
    v_lshl_add_u32 v3, v1, 2, v3
    ''')
    for i in range(8):
        A('ds_read_b32 %s, v3 offset:%d' % (v(64 + i), i * 128))
    A('s_waitcnt lgkmcnt(0)')
    A('''
    v_add_f32 v64, v64, v65
    v_add_f32 v66, v66, v67
    v_add_f32 v68, v68, v69
    v_add_f32 v70, v70, v71
    v_add_f32 v64, v64, v66
    v_add_f32 v68, v68, v70
    v_add_f32 v64, v64, v68
    v_lshlrev_b32 v3, 2, v0
    ds_write_b32 v3, v64 offset:8192
    s_waitcnt lgkmcnt(0)
    s_barrier
    v_readfirstlane_b32 s28, v0
    s_cmp_ge_u32 s28, 64
    s_cbranch_scc1 K0_END
    v_lshlrev_b32 v3, 2, v1
    ''')
    for i in range(8):
        A('ds_read_b32 %s, v3 offset:%d' % (v(64 + i), 8192 + i * 128))
    A('s_waitcnt lgkmcnt(0)')
    A('''
    v_add_f32 v64, v64, v65
    v_add_f32 v66, v66, v67
    v_add_f32 v68, v68, v69
    v_add_f32 v70, v70, v71
    v_add_f32 v64, v64, v66
    v_add_f32 v68, v68, v70
    v_add_f32 v64, v64, v68
    ''')
    bf16r(A, 64, 64)
    A('''
    s_lshr_b32 s28, s2, 4
    s_cmp_eq_u32 s28, 1
    s_cbranch_scc1 K0_PLUS1
    s_cmp_eq_u32 s28, 4
    s_cbranch_scc0 K0_STORE
    ''')
    A.label('K0_PLUS1')
    A('v_add_f32 v64, 1.0, v64')
    bf16r(A, 64, 64)
    A.label('K0_STORE')
    A('''
    s_lshl_b32 s28, s2, 7
    v_add_u32 v3, s28, v3
    buffer_store_dword v64, v3, s[20:23], 0 offen
    s_endpgm
    ''')
    A.label('K0_XH')
    A.fence()
    srd(A, 12, 4, 2048 * 1024)
    srd(A, 16, 6, 2048 * 1024, WS_XH)
    srd(A, 20, 6, 69632, WS_KVACC)
    A('''
    s_sub_u32 s24, s2, 96
    s_lshl_b32 s25, s24, 13
    v_lshrrev_b32 v1, 6, v0
    v_and_b32 v2, 63, v0
    v_lshlrev_b32 v1, 11, v1
    v_lshl_add_u32 v1, v2, 4, v1
    buffer_load_dwordx4 v[4:7], v1, s[12:15], s25 offen
    buffer_load_dwordx4 v[8:11], v1, s[12:15], s25 offen offset:1024
    s_cmp_ge_u32 s24, 17
    s_cbranch_scc1 K0_NOZERO
    v_mov_b32 v12, 0
    v_mov_b32 v13, 0
    v_mov_b32 v14, 0
    v_mov_b32 v15, 0
    v_lshlrev_b32 v2, 4, v0
    s_lshl_b32 s26, s24, 12
    buffer_store_dwordx4 v[12:15], v2, s[20:23], s26 offen
    ''')
    A.label('K0_NOZERO')
    A('s_waitcnt vmcnt(0)')
    R = [(4, 16, 32, 40), (8, 24, 33, 41)]
    for raw, f, st, t in R:
        for d in range(4):
            unpack(A, f + 2 * d, f + 2 * d + 1, raw + d)
    for raw, f, st, t in R:
        A('v_add_f32 %s, %s, %s' % (v(st), v(f), v(f + 1)))
        for i in range(2, 8):
            A('v_add_f32 %s, %s, %s' % (v(st), v(st), v(f + i)))
    for raw, f, st, t in R:
        wave_allreduce(A, st, t)
    A('s_mov_b32 s27, 0x3b000000')
    for raw, f, st, t in R:
        A('v_mul_f32 %s, s27, %s' % (v(st), v(st)))
        A('v_mov_b32 %s, 0' % v(st + 2))
        for i in range(8):
            A('v_sub_f32 %s, %s, %s' % (v(t), v(f + i), v(st)))
            A('v_fmac_f32 %s, %s, %s' % (v(st + 2), v(t), v(t)))
    for raw, f, st, t in R:
        wave_allreduce(A, st + 2, t)
    A('s_mov_b32 s28, 0x3727c5ac')
    for raw, f, st, t in R:
        A('v_mul_f32 %s, s27, %s' % (v(st + 2), v(st + 2)))
        bf16r(A, st, st)
        bf16r(A, st + 2, st + 2)
        A('v_add_f32 %s, s28, %s' % (v(st + 2), v(st + 2)))
        bf16r(A, st + 2, st + 2)
        A('v_sqrt_f32 %s, %s' % (v(st + 2), v(st + 2)))
        bf16r(A, st + 2, st + 2)
        A('v_rcp_f32 %s, %s' % (v(st + 2), v(st + 2)))
    for raw, f, st, t in R:
        for i in range(8):
            A('v_sub_f32 %s, %s, %s' % (v(f + i), v(f + i), v(st)))
        for d in range(4):
            A('v_cvt_pk_bf16_f32 %s, %s, %s' % (v(raw + d), v(f + 2 * d), v(f + 2 * d + 1)))
        for d in range(4):
            unpack(A, f + 2 * d, f + 2 * d + 1, raw + d)
        for i in range(8):
            A('v_mul_f32 %s, %s, %s' % (v(f + i), v(f + i), v(st + 2)))
        for d in range(4):
            A('v_cvt_pk_bf16_f32 %s, %s, %s' % (v(raw + d), v(f + 2 * d), v(f + 2 * d + 1)))
    A('''
    buffer_store_dwordx4 v[4:7], v1, s[16:19], s25 offen
    buffer_store_dwordx4 v[8:11], v1, s[16:19], s25 offen offset:1024
    ''')
    A.label('K0_END')
    A('s_endpgm')
    return dict(name=name, grid=352, block=256, lds=9216, vgpr=80, sgpr=32, accum=80)
```

```python
from common import *

B_BYTES = 98304
CONST_OFF = 98304
RED_OFF = 102400
ZRED_OFF = RED_OFF + 16384
K1_LDS = ZRED_OFF + 16384


def softmax_pm(A, P, T, out, s_l2e, s_nl2e):
    c0, c1, mx, mn, t0, t1 = T, T + 1, T + 2, T + 3, T + 4, T + 5
    F = T + 6
    sp, sn = T + 10, T + 11
    A('v_cvt_pk_bf16_f32 %s, %s, %s' % (v(c0), v(P), v(P + 1)))
    A('v_cvt_pk_bf16_f32 %s, %s, %s' % (v(c1), v(P + 2), v(P + 3)))
    unpack(A, P, P + 1, c0)
    unpack(A, P + 2, P + 3, c1)
    A('v_max3_f32 %s, %s, %s, %s' % (v(mx), v(P), v(P + 1), v(P + 2)))
    A('v_min3_f32 %s, %s, %s, %s' % (v(mn), v(P), v(P + 1), v(P + 2)))
    A('v_max_f32 %s, %s, %s' % (v(mx), v(mx), v(P + 3)))
    A('v_min_f32 %s, %s, %s' % (v(mn), v(mn), v(P + 3)))
    for sw in ('v_permlane16_swap_b32', 'v_permlane32_swap_b32'):
        A('v_mov_b32 %s, %s' % (v(t0), v(mx)))
        A('v_mov_b32 %s, %s' % (v(t1), v(mn)))
        A('%s %s, %s' % (sw, v(t0), v(mx)))
        A('%s %s, %s' % (sw, v(t1), v(mn)))
        A('v_max_f32 %s, %s, %s' % (v(mx), v(t0), v(mx)))
        A('v_min_f32 %s, %s, %s' % (v(mn), v(t1), v(mn)))
    A('v_mul_f32 %s, %s, %s' % (v(mx), s_nl2e, v(mx)))
    A('v_mul_f32 %s, %s, %s' % (v(mn), s_l2e, v(mn)))
    for r in range(4):
        A('v_fma_f32 %s, %s, %s, %s' % (v(F + r), v(P + r), s_nl2e, v(mn)))
    for r in range(4):
        A('v_fma_f32 %s, %s, %s, %s' % (v(P + r), v(P + r), s_l2e, v(mx)))
    for r in range(4):
        A('v_exp_f32 %s, %s' % (v(P + r), v(P + r)))
    for r in range(4):
        A('v_exp_f32 %s, %s' % (v(F + r), v(F + r)))
    A('v_add_f32 %s, %s, %s' % (v(sp), v(P), v(P + 1)))
    A('v_add_f32 %s, %s, %s' % (v(sn), v(F), v(F + 1)))
    A('v_add_f32 %s, %s, %s' % (v(t0), v(P + 2), v(P + 3)))
    A('v_add_f32 %s, %s, %s' % (v(t1), v(F + 2), v(F + 3)))
    A('v_add_f32 %s, %s, %s' % (v(sp), v(sp), v(t0)))
    A('v_add_f32 %s, %s, %s' % (v(sn), v(sn), v(t1)))
    for sw in ('v_permlane16_swap_b32', 'v_permlane32_swap_b32'):
        A('v_mov_b32 %s, %s' % (v(t0), v(sp)))
        A('v_mov_b32 %s, %s' % (v(t1), v(sn)))
        A('%s %s, %s' % (sw, v(t0), v(sp)))
        A('%s %s, %s' % (sw, v(t1), v(sn)))
        A('v_add_f32 %s, %s, %s' % (v(sp), v(t0), v(sp)))
        A('v_add_f32 %s, %s, %s' % (v(sn), v(t1), v(sn)))
    A('v_rcp_f32 %s, %s' % (v(sp), v(sp)))
    A('v_rcp_f32 %s, %s' % (v(sn), v(sn)))
    for r in range(4):
        A('v_mul_f32 %s, %s, %s' % (v(P + r), v(P + r), v(sp)))
    for r in range(4):
        A('v_mul_f32 %s, %s, %s' % (v(F + r), v(F + r), v(sn)))
    A('v_cvt_pk_bf16_f32 %s, %s, %s' % (v(out), v(P), v(P + 1)))
    A('v_cvt_pk_bf16_f32 %s, %s, %s' % (v(out + 1), v(P + 2), v(P + 3)))
    A('v_cvt_pk_bf16_f32 %s, %s, %s' % (v(out + 2), v(F), v(F + 1)))
    A('v_cvt_pk_bf16_f32 %s, %s, %s' % (v(out + 3), v(F + 2), v(F + 3)))


def gen_k1(A):
    name = 'k1_qkv_kernel'
    kernel_begin(A, name)
    A('''
    s_cmp_ge_u32 s2, 256
    s_cbranch_scc1 K1_END
    s_load_dwordx4 s[4:7], s[0:1], 8
    s_load_dwordx2 s[8:9], s[0:1], 96
    v_lshrrev_b32 v2, 6, v0
    v_and_b32 v1, 63, v0
    v_readfirstlane_b32 s36, v2
    s_lshr_b32 s37, s2, 4
    s_and_b32 s38, s2, 15
    s_mov_b32 s44, 0x%x
    s_mov_b32 s45, 0x%x
    s_waitcnt lgkmcnt(0)
    ''' % (LOG2E, LOG2E | 0x80000000))
    srd(A, 12, 4, 512 * 3072)
    srd(A, 16, 8, 2048 * 1024, WS_XH)
    srd(A, 20, 8, 12288, WS_MODF)
    srd(A, 24, 6, 32 * 512)
    srd(A, 28, 8, 2048 * 2048, WS_PHIQ)
    srd(A, 32, 8, 69632, WS_KVACC)
    A('''
    v_and_b32 v3, 15, v1
    v_lshrrev_b32 v4, 4, v1
    ''')
    A('''
    v_lshlrev_b32 v5, 4, v1
    s_lshl_b32 s39, s36, 10
    s_add_u32 s40, s39, %d
    s_mov_b32 m0, s40
    buffer_load_dwordx4 v5, s[20:23], s39 offen lds
    ''' % CONST_OFF)
    for t in range(3):
        A('''
        s_add_u32 s39, s36, %d
        s_mul_i32 s40, s39, 43691
        s_lshr_b32 s40, s40, 17
        s_mul_i32 s40, s40, 3
        s_sub_u32 s39, s39, s40
        s_lshl_b32 s39, s39, 6
        v_add_u32 v12, s39, v1
        v_mul_u32_u24 v13, 43691, v12
        v_lshrrev_b32 v13, 19, v13
        v_mul_u32_u24 v14, 12, v13
        v_sub_u32 v14, v12, v14
        v_lshrrev_b32 v15, 1, v14
        v_and_b32 v14, 1, v14
        v_lshrrev_b32 v16, 3, v13
        v_xor_b32 v15, v15, v16
        v_mul_u32_u24 v13, 3072, v13
        v_lshrrev_b32 v16, 1, v15
        v_lshl_add_u32 v13, v16, 10, v13
        v_and_b32 v16, 1, v15
        v_lshl_add_u32 v13, v16, 5, v13
        v_lshl_add_u32 %s, v14, 4, v13
        ''' % (t, v(8 + t)))
    A('''
    v_lshlrev_b32 v6, 10, v3
    v_lshl_add_u32 v6, v4, 4, v6
    v_add_u32 v7, 16384, v6
    s_lshl_b32 s46, s37, 17
    s_lshl_b32 s39, s36, 15
    s_add_u32 s46, s46, s39
    s_lshl_b32 s41, s38, 6
    ''')
    AR = 64
    for p in range(4):
        for ii in range(6):
            i = p * 6 + ii
            A('''
            s_add_u32 s39, s36, %d
            s_mul_i32 s40, s39, 43691
            s_lshr_b32 s40, s40, 17
            s_mul_i32 s40, s40, 49152
            s_add_u32 s40, s40, s41
            s_lshl_b32 s39, s39, 10
            s_mov_b32 m0, s39
            buffer_load_dwordx4 %s, s[12:15], s40 offen lds
            ''' % (4 * i, v(8 + i % 3)))
        for ks in range(4 * p, 4 * p + 4):
            for f in range(2):
                A('buffer_load_dwordx4 %s, %s, s[16:19], s46 offen offset:%d' % (v(AR + (ks * 2 + f) * 4, 4), v(6 + f), ks * 64))
    A('''
    v_lshrrev_b32 v12, 2, v3
    v_lshl_add_u32 v12, v4, 3, v12
    v_mul_u32_u24 v12, 192, v12
    v_and_b32 v13, 3, v3
    v_lshl_add_u32 v12, v13, 3, v12
    v_and_b32 v13, 1, v4
    v_lshlrev_b32 v13, 5, v13
    v_add_u32 v16, v12, v13
    v_sub_u32 v17, v12, v13
    v_add_u32 v17, 32, v17
    v_add_u32 v18, 49152, v16
    v_add_u32 v19, 49152, v17
    v_lshlrev_b32 v20, 5, v4
    v_add_u32 v20, %d, v20
    ''' % CONST_OFF)
    for i in range(48):
        A('v_accvgpr_write_b32 %s, 0' % a(i))
    CB = 32
    BB = 192
    TMP = 240

    def read_consts(ks):
        c = CB + (ks & 1) * 16
        A('ds_read_b128 %s, v20 offset:%d' % (v(c, 4), ks * 128))
        A('ds_read_b128 %s, v20 offset:%d' % (v(c + 4, 4), ks * 128 + 16))
        A('ds_read_b128 %s, v20 offset:%d' % (v(c + 8, 4), ks * 128 + 2048))
        A('ds_read_b128 %s, v20 offset:%d' % (v(c + 12, 4), ks * 128 + 2064))

    def read_B(ks):
        bb = BB + (ks & 1) * 24
        for b in range(6):
            base = (16 if b % 2 == 0 else 17) + (2 if ks >= 8 else 0)
            for half in range(2):
                off = (ks % 8) * 6144 + half * 768 + (b & ~1) * 32
                A('ds_read_b64_tr_b16 %s, %s offset:%d' % (v(bb + b * 4 + half * 2, 2), v(base), off))

    def procA_instrs(ks):
        c = CB + (ks & 1) * 16
        L = []
        for f in range(2):
            R = AR + (ks * 2 + f) * 4
            for d in range(4):
                t = TMP + ((f * 4 + d) % 4) * 2
                L.append('v_lshlrev_b32 %s, 16, %s' % (v(t), v(R + d)))
                L.append('v_and_b32 %s, 0xffff0000, %s' % (v(t + 1), v(R + d)))
                L.append('v_fma_f32 %s, %s, %s, %s' % (v(t), v(t), v(c + 8 + 2 * d), v(c + 2 * d)))
                L.append('v_fma_f32 %s, %s, %s, %s' % (v(t + 1), v(t + 1), v(c + 9 + 2 * d), v(c + 1 + 2 * d)))
                L.append('v_cvt_pk_bf16_f32 %s, %s, %s' % (v(R + d), v(t), v(t + 1)))
        return L

    def mfma_instrs(ks):
        bb = BB + (ks & 1) * 24
        L = []
        for b in range(6):
            for f in range(2):
                R = AR + (ks * 2 + f) * 4
                acc = a((f * 6 + b) * 4, 4)
                if b < 4:
                    L.append('v_mfma_f32_16x16x32_bf16 %s, %s, %s, %s' % (acc, v(bb + b * 4, 4), v(R, 4), acc))
                else:
                    L.append('v_mfma_f32_16x16x32_bf16 %s, %s, %s, %s' % (acc, v(R, 4), v(bb + b * 4, 4), acc))
        return L

    A('s_waitcnt vmcnt(42)')
    A('s_barrier')
    A('''
    v_lshlrev_b32 v21, 7, v4
    v_lshl_add_u32 v21, v3, 1, v21
    s_lshl_b32 s39, s38, 10
    ''')
    for hl in range(2):
        for j in range(4):
            A('buffer_load_ushort %s, v21, s[24:27], s39 offen offset:%d' % (v(248 + 4 * hl + j), hl * 512 + j * 32))
    read_consts(0)
    read_consts(1)
    read_B(0)
    A('s_waitcnt lgkmcnt(12)')
    for ins in procA_instrs(0):
        A(ins)
    waits = {3: 36, 7: 22, 11: 8}
    for ks in range(16):
        if ks in waits:
            A('s_waitcnt vmcnt(%d)' % waits[ks])
            A('s_barrier')
        A('s_waitcnt lgkmcnt(0)')
        if ks + 1 < 16:
            read_B(ks + 1)
        M = mfma_instrs(ks)
        V = procA_instrs(ks + 1) if ks + 1 < 16 else []
        vi = 0
        for mi, m in enumerate(M):
            A(m)
            n = (len(V) * (mi + 1)) // len(M) - vi
            for _ in range(n):
                A(V[vi])
                vi += 1
        if ks + 2 < 16:
            read_consts(ks + 2)
    A('s_waitcnt vmcnt(0)')
    for q in range(4):
        A('v_lshl_or_b32 %s, %s, 16, %s' % (v(24 + q), v(249 + 2 * q), v(248 + 2 * q)))
    A('''
    v_lshlrev_b32 v12, 2, v4
    v_sub_u32 v12, v3, v12
    v_mov_b32 v28, 0
    v_mov_b32 v29, 0
    v_mov_b32 v13, 0x3f80
    v_mov_b32 v14, 0x3f800000
    v_cmp_eq_u32 vcc, 0, v12
    v_cndmask_b32 v28, v28, v13, vcc
    v_cmp_eq_u32 vcc, 1, v12
    v_cndmask_b32 v28, v28, v14, vcc
    v_cmp_eq_u32 vcc, 2, v12
    v_cndmask_b32 v29, v29, v13, vcc
    v_cmp_eq_u32 vcc, 3, v12
    v_cndmask_b32 v29, v29, v14, vcc
    v_mov_b32 v32, 0x3f803f80
    v_mov_b32 v33, 0x3f803f80
    v_mov_b32 v34, 0x3f803f80
    v_mov_b32 v35, 0x3f803f80
    ''')
    A('''
    v_lshlrev_b32 v22, 11, v3
    v_lshl_add_u32 v22, v4, 4, v22
    s_lshl_b32 s47, s46, 1
    s_lshl_b32 s39, s38, 7
    s_add_u32 s47, s47, s39
    v_lshlrev_b32 v23, 5, v1
    s_lshl_b32 s39, s36, 12
    v_add_u32 v23, s39, v23
    v_add_u32 v23, %d, v23
    ''' % RED_OFF)
    X = 64
    XB = 68
    P = 72
    OUT = 76
    T = 80
    KAP = 96
    KAN = 100
    VB = 104
    TP = 108
    TN = 112
    KV = 116
    for hl in range(2):
        for f in range(2):
            for typ in range(2):
                acc = (f * 6 + typ * 2 + hl) * 4
                for r in range(4):
                    A('v_accvgpr_read_b32 %s, %s' % (v(X + r), a(acc + r)))
                A('v_cvt_pk_bf16_f32 %s, %s, %s' % (v(XB), v(X), v(X + 1)))
                A('v_cvt_pk_bf16_f32 %s, %s, %s' % (v(XB + 1), v(X + 2), v(X + 3)))
                A('v_mfma_f32_16x16x16_bf16 %s, %s, %s, 0' % (v(P, 4), v(24 + 2 * hl, 2), v(XB, 2)))
                softmax_pm(A, P, T, OUT, 's44', 's45')
                if typ == 0:
                    A('buffer_store_dwordx4 %s, v22, s[28:31], s47 offen offset:%d' % (v(OUT, 4), f * 32768 + hl * 64)) if f == 0 else None
                    if f == 1:
                        A('v_add_u32 v36, 32768, v22')
                        A('buffer_store_dwordx4 %s, v36, s[28:31], s47 offen offset:%d' % (v(OUT, 4), hl * 64))
                    A('s_nop 1')
                else:
                    A('v_mfma_f32_16x16x16_bf16 %s, %s, v[28:29], 0' % (v(TP, 4), v(OUT, 2)))
                    A('v_mfma_f32_16x16x16_bf16 %s, %s, v[28:29], 0' % (v(TN, 4), v(OUT + 2, 2)))
                    A('v_cvt_pk_bf16_f32 %s, %s, %s' % (v(KAP + 2 * f), v(TP), v(TP + 1)))
                    A('v_cvt_pk_bf16_f32 %s, %s, %s' % (v(KAP + 2 * f + 1), v(TP + 2), v(TP + 3)))
                    A('v_cvt_pk_bf16_f32 %s, %s, %s' % (v(KAN + 2 * f), v(TN), v(TN + 1)))
                    A('v_cvt_pk_bf16_f32 %s, %s, %s' % (v(KAN + 2 * f + 1), v(TN + 2), v(TN + 3)))
            acc = (f * 6 + 4 + hl) * 4
            for r in range(4):
                A('v_accvgpr_read_b32 %s, %s' % (v(X + r), a(acc + r)))
            A('v_cvt_pk_bf16_f32 %s, %s, %s' % (v(VB + 2 * f), v(X), v(X + 1)))
            A('v_cvt_pk_bf16_f32 %s, %s, %s' % (v(VB + 2 * f + 1), v(X + 2), v(X + 3)))
        A('v_mfma_f32_16x16x32_bf16 %s, %s, %s, 0' % (v(KV, 4), v(KAP, 4), v(VB, 4)))
        A('v_mfma_f32_16x16x32_bf16 %s, %s, %s, 0' % (v(KV + 4, 4), v(KAN, 4), v(VB, 4)))
        A('v_mfma_f32_16x16x32_bf16 %s, %s, v[32:35], 0' % (v(KV + 8, 4), v(KAP, 4)))
        A('v_mfma_f32_16x16x32_bf16 %s, %s, v[32:35], 0' % (v(KV + 12, 4), v(KAN, 4)))
        A('ds_write_b128 v23, %s offset:%d' % (v(KV, 4), hl * 2048))
        A('ds_write_b128 v23, %s offset:%d' % (v(KV + 4, 4), hl * 2048 + 16))
        A('ds_write_b128 v23, %s offset:%d' % (v(KV + 8, 4), 16384 + hl * 2048))
        A('ds_write_b128 v23, %s offset:%d' % (v(KV + 12, 4), 16384 + hl * 2048 + 16))
    A('''
    s_waitcnt lgkmcnt(0)
    s_barrier
    v_lshlrev_b32 v12, 2, v0
    v_add_u32 v15, %d, v12
    ''' % RED_OFF)
    for i in range(4):
        for w in range(4):
            A('ds_read_b32 %s, v15 offset:%d' % (v(64 + i * 4 + w), w * 4096 + i * 1024))
    A('''
    s_lshl_b32 s39, s38, 12
    s_waitcnt lgkmcnt(0)
    ''')
    for i in range(4):
        b = 64 + i * 4
        A('v_add_f32 %s, %s, %s' % (v(b), v(b), v(b + 1)))
        A('v_add_f32 %s, %s, %s' % (v(b + 2), v(b + 2), v(b + 3)))
        A('v_add_f32 %s, %s, %s' % (v(b), v(b), v(b + 2)))
        A('buffer_atomic_add_f32 %s, v12, s[32:35], s39 offen offset:%d' % (v(b), i * 1024))
    A('''
    s_cmp_lg_u32 s36, 0
    s_cbranch_scc1 K1_END
    v_lshrrev_b32 v13, 5, v1
    v_lshlrev_b32 v13, 11, v13
    v_bfe_u32 v14, v1, 3, 2
    v_lshl_add_u32 v13, v14, 9, v13
    v_and_b32 v14, 7, v1
    v_lshl_add_u32 v13, v14, 2, v13
    v_add_u32 v13, %d, v13
    ''' % ZRED_OFF)
    for w in range(4):
        A('ds_read_b32 %s, v13 offset:%d' % (v(80 + w), w * 4096))
    A('''
    s_lshl_b32 s39, s38, 8
    s_add_u32 s39, s39, 65536
    s_waitcnt lgkmcnt(0)
    v_add_f32 v80, v80, v81
    v_add_f32 v82, v82, v83
    v_add_f32 v80, v80, v82
    buffer_atomic_add_f32 v80, v12, s[32:35], s39 offen
    ''')
    A.label('K1_END')
    A('s_endpgm')
    return dict(name=name, grid=256, block=256, lds=K1_LDS, vgpr=256 + 48, sgpr=48, accum=256)
```

```python
from common import *

RED = 65536
RSTRIDE = 272
RWAVE = 64 * RSTRIDE
K2_LDS = RED + 4 * RWAVE


def reduce_epilogue(A, vm, red_off, xsrd, osrd, gsrd_off_tag, stats):
    pass


def gen_k2(A):
    name = 'k2_wo_kernel'
    kernel_begin(A, name)
    vm = VM(A)
    A('''
    s_cmp_ge_u32 s2, 256
    s_cbranch_scc1 K2_END
    s_load_dwordx2 s[4:5], s[0:1], 0
    s_load_dwordx2 s[6:7], s[0:1], 24
    s_load_dwordx2 s[8:9], s[0:1], 96
    v_lshrrev_b32 v2, 6, v0
    v_and_b32 v1, 63, v0
    v_readfirstlane_b32 s40, v2
    s_lshr_b32 s41, s2, 3
    s_and_b32 s42, s2, 7
    s_waitcnt lgkmcnt(0)
    ''')
    srd(A, 12, 4, 2048 * 1024)
    srd(A, 16, 6, 512 * 1024)
    srd(A, 20, 8, 2048 * 2048, WS_PHIQ)
    srd(A, 24, 8, 69632, WS_KVACC)
    srd(A, 28, 8, 12288, WS_MODF)
    srd(A, 32, 8, 2048 * 1024, WS_X1)
    srd(A, 36, 8, 2048 * 64, WS_STATS)
    A('''
    v_and_b32 v3, 15, v1
    v_lshrrev_b32 v4, 4, v1
    v_lshlrev_b32 v5, 5, v1
    v_lshlrev_b32 v6, 5, v4
    s_lshl_b32 s43, s40, 14
    s_lshl_b32 s44, s40, 10
    s_add_u32 s44, s44, 65536
    ''')
    RAW = 64
    for hh in range(8):
        A('buffer_load_dwordx4 %s, v5, s[24:27], s43 offen' % v(RAW + hh * 16, 4))
        A('buffer_load_dwordx4 %s, v5, s[24:27], s43 offen offset:16' % v(RAW + hh * 16 + 4, 4))
        A('buffer_load_dwordx4 %s, v6, s[24:27], s44 offen offset:%d' % (v(RAW + hh * 16 + 8, 4), hh * 128))
        A('buffer_load_dwordx4 %s, v6, s[24:27], s44 offen offset:%d' % (v(RAW + hh * 16 + 12, 4), hh * 128 + 16))
        vm.issue('kvz', 4)
        if hh < 7:
            A('s_add_u32 s43, s43, 2048')
    A('''
    v_lshlrev_b32 v7, 11, v3
    v_lshl_add_u32 v7, v4, 4, v7
    v_add_u32 v8, 32768, v7
    v_add_u32 v9, 65536, v7
    v_add_u32 v10, 98304, v7
    s_lshl_b32 s43, s41, 17
    s_lshl_b32 s44, s40, 9
    s_add_u32 s43, s43, s44
    ''')
    PQ = 64
    for hh in range(8):
        for rf in range(4):
            A('buffer_load_dwordx4 %s, %s, s[20:23], s43 offen offset:%d' % (a(PQ + (rf * 8 + hh) * 4, 4), v(7 + rf), hh * 64))
            vm.issue('pq')
    A('''
    v_lshrrev_b32 v11, 3, v1
    v_and_b32 v12, 7, v1
    v_lshrrev_b32 v13, 1, v12
    v_bfe_u32 v14, v11, 1, 2
    v_xor_b32 v13, v13, v14
    v_and_b32 v12, 1, v12
    v_lshlrev_b32 v11, 10, v11
    v_lshl_add_u32 v11, v13, 5, v11
    v_lshl_add_u32 v11, v12, 4, v11
    s_lshl_b32 s43, s40, 17
    s_lshl_b32 s44, s42, 7
    s_add_u32 s43, s43, s44
    s_lshl_b32 s44, s40, 14
    ''')
    for i in range(16):
        A('s_mov_b32 m0, s44')
        A('buffer_load_dwordx4 v11, s[16:19], s43 offen lds')
        vm.issue('wo')
        if i < 15:
            A('s_add_u32 s43, s43, 8192')
            A('s_add_u32 s44, s44, 1024')
    A('''
    v_lshrrev_b32 v16, 2, v0
    v_and_b32 v17, 3, v0
    v_lshlrev_b32 v18, 10, v16
    v_lshl_add_u32 v18, v17, 5, v18
    s_lshl_b32 s45, s41, 16
    s_lshl_b32 s44, s42, 7
    s_add_u32 s45, s45, s44
    v_lshlrev_b32 v19, 6, v17
    s_lshl_b32 s46, s42, 8
    s_add_u32 s46, s46, 4096
    ''')
    A('''
    v_lshrrev_b32 v12, 2, v3
    v_lshl_add_u32 v12, v4, 2, v12
    v_lshlrev_b32 v12, 7, v12
    v_and_b32 v13, 3, v3
    v_lshl_add_u32 v12, v13, 3, v12
    s_lshl_b32 s44, s40, 14
    v_add_u32 v12, s44, v12
    v_lshrrev_b32 v13, 3, v3
    v_lshl_add_u32 v13, v4, 1, v13
    v_and_b32 v13, 3, v13
    ''')
    for cf in range(4):
        A('v_xor_b32 v14, %d, v13' % cf)
        A('v_lshl_add_u32 %s, v14, 5, v12' % v(20 + cf))
    for i in range(64):
        A('v_accvgpr_write_b32 %s, 0' % a(i))
    KVB, ZB = 192, 224
    vm.wait('kvz')
    for hh in range(8):
        for q in range(4):
            A('v_cvt_pk_bf16_f32 %s, %s, %s' % (v(KVB + hh * 4 + q), v(RAW + hh * 16 + 2 * q), v(RAW + hh * 16 + 2 * q + 1)))
        for q in range(4):
            A('v_cvt_pk_bf16_f32 %s, %s, %s' % (v(ZB + hh * 4 + q), v(RAW + hh * 16 + 8 + 2 * q), v(RAW + hh * 16 + 8 + 2 * q + 1)))
    vm.wait('wo')
    A('s_mov_b32 s47, 0x358637bd')
    WF = 32
    ND = 64
    O = 128
    T = 144

    def read_wo(t):
        for cf in range(4):
            for half in range(2):
                A('ds_read_b64_tr_b16 %s, %s offset:%d' % (v(WF + (t & 1) * 16 + cf * 4 + half * 2, 2), v(20 + cf), t * 4096 + half * 2048))
    read_wo(0)
    for t in range(4):
        for rf in range(4):
            for h2 in range(2):
                hh = 2 * t + h2
                nd = ND + (rf * 2 + h2) * 8
                A('v_mfma_f32_16x16x32_bf16 %s, %s, %s, 0' % (v(nd, 4), v(KVB + hh * 4, 4), a(PQ + (rf * 8 + hh) * 4, 4)))
                A('v_mfma_f32_16x16x32_bf16 %s, %s, %s, 0' % (v(nd + 4, 4), v(ZB + hh * 4, 4), a(PQ + (rf * 8 + hh) * 4, 4)))
        for q in range(8):
            nd = ND + q * 8
            bf16r(A, T + q, nd + 4)
        for q in range(8):
            A('v_add_f32 %s, s47, %s' % (v(T + q), v(T + q)))
        for q in range(8):
            bf16r(A, T + q, T + q)
        for q in range(8):
            A('v_rcp_f32 %s, %s' % (v(T + q), v(T + q)))
        for q in range(8):
            nd = ND + q * 8
            for r in range(4):
                A('v_mul_f32 %s, %s, %s' % (v(nd + r), v(nd + r), v(T + q)))
            A('v_cvt_pk_bf16_f32 %s, %s, %s' % (v(O + q * 2), v(nd), v(nd + 1)))
            A('v_cvt_pk_bf16_f32 %s, %s, %s' % (v(O + q * 2 + 1), v(nd + 2), v(nd + 3)))
        A('s_waitcnt lgkmcnt(0)')
        if t < 3:
            read_wo(t + 1)
        for rf in range(4):
            for cf in range(4):
                acc = a((rf * 4 + cf) * 4, 4)
                A('v_mfma_f32_16x16x32_bf16 %s, %s, %s, %s' % (acc, v(WF + (t & 1) * 16 + cf * 4, 4), v(O + rf * 4, 4), acc))
    XR, GA = 160, 168
    A('buffer_load_dwordx4 %s, v18, s[12:15], s45 offen' % v(XR, 4))
    A('buffer_load_dwordx4 %s, v18, s[12:15], s45 offen offset:16' % v(XR + 4, 4))
    for q in range(4):
        A('buffer_load_dwordx4 %s, v19, s[28:31], s46 offen offset:%d' % (v(GA + q * 4, 4), q * 16))
    A('''
    v_mul_u32_u24 v12, %d, v3
    v_lshl_add_u32 v12, v4, 4, v12
    s_mul_i32 s44, s40, %d
    s_add_u32 s44, s44, %d
    v_add_u32 v12, s44, v12
    ''' % (RSTRIDE, RWAVE, RED))
    for rf in range(4):
        for cf in range(4):
            A('ds_write_b128 v12, %s offset:%d' % (a((rf * 4 + cf) * 4, 4), rf * 16 * RSTRIDE + cf * 64))
    A('''
    s_waitcnt lgkmcnt(0)
    s_barrier
    v_mul_u32_u24 v12, %d, v16
    v_lshl_add_u32 v12, v17, 6, v12
    v_add_u32 v12, %d, v12
    ''' % (RSTRIDE, RED))
    Y = 64
    for w in range(4):
        for j in range(4):
            A('ds_read_b128 %s, v12 offset:%d' % (v(Y + w * 16 + j * 4, 4), w * RWAVE + j * 16))
    A('s_waitcnt lgkmcnt(0)')
    for i in range(16):
        A('v_add_f32 %s, %s, %s' % (v(Y + i), v(Y + i), v(Y + 16 + i)))
        A('v_add_f32 %s, %s, %s' % (v(Y + 32 + i), v(Y + 32 + i), v(Y + 48 + i)))
    for i in range(16):
        A('v_add_f32 %s, %s, %s' % (v(Y + i), v(Y + i), v(Y + 32 + i)))
    P = 128
    for d in range(8):
        A('v_cvt_pk_bf16_f32 %s, %s, %s' % (v(P + d), v(Y + 2 * d), v(Y + 2 * d + 1)))
    for d in range(8):
        unpack(A, Y + 2 * d, Y + 2 * d + 1, P + d)
    A('s_waitcnt vmcnt(0)')
    for i in range(16):
        A('v_mul_f32 %s, %s, %s' % (v(Y + i), v(Y + i), v(GA + i)))
    for d in range(8):
        A('v_cvt_pk_bf16_f32 %s, %s, %s' % (v(P + d), v(Y + 2 * d), v(Y + 2 * d + 1)))
    for d in range(8):
        unpack(A, Y + 2 * d, Y + 2 * d + 1, P + d)
    XF = 96
    for d in range(8):
        unpack(A, XF + 2 * d, XF + 2 * d + 1, XR + d)
    for i in range(16):
        A('v_add_f32 %s, %s, %s' % (v(Y + i), v(Y + i), v(XF + i)))
    for d in range(8):
        A('v_cvt_pk_bf16_f32 %s, %s, %s' % (v(P + d), v(Y + 2 * d), v(Y + 2 * d + 1)))
    A('buffer_store_dwordx4 %s, v18, s[32:35], s45 offen' % v(P, 4))
    A('buffer_store_dwordx4 %s, v18, s[32:35], s45 offen offset:16' % v(P + 4, 4))
    for d in range(8):
        unpack(A, Y + 2 * d, Y + 2 * d + 1, P + d)
    S, M2, TT = 140, 141, 142
    A('v_add_f32 %s, %s, %s' % (v(S), v(Y), v(Y + 1)))
    for i in range(2, 16):
        A('v_add_f32 %s, %s, %s' % (v(S), v(S), v(Y + i)))
    A('v_add_f32_dpp %s, %s, %s quad_perm:[1,0,3,2] row_mask:0xf bank_mask:0xf' % (v(TT), v(S), v(S)))
    A('v_add_f32_dpp %s, %s, %s quad_perm:[2,3,0,1] row_mask:0xf bank_mask:0xf' % (v(S), v(TT), v(TT)))
    A('v_mul_f32 %s, 0x3c800000, %s' % (v(TT + 1), v(S)))
    A('v_mov_b32 %s, 0' % v(M2))
    for i in range(16):
        A('v_sub_f32 %s, %s, %s' % (v(Y + i), v(Y + i), v(TT + 1)))
    for i in range(16):
        A('v_fmac_f32 %s, %s, %s' % (v(M2), v(Y + i), v(Y + i)))
    A('v_add_f32_dpp %s, %s, %s quad_perm:[1,0,3,2] row_mask:0xf bank_mask:0xf' % (v(TT), v(M2), v(M2)))
    A('v_add_f32_dpp %s, %s, %s quad_perm:[2,3,0,1] row_mask:0xf bank_mask:0xf' % (v(M2), v(TT), v(TT)))
    A('''
    v_lshlrev_b32 v12, 6, v16
    s_lshl_b32 s44, s41, 12
    s_lshl_b32 s43, s42, 3
    s_add_u32 s44, s44, s43
    buffer_store_dwordx2 v[140:141], v12, s[36:39], s44 offen
    ''')
    A.label('K2_END')
    A('s_endpgm')
    return dict(name=name, grid=256, block=256, lds=K2_LDS, vgpr=256 + 192, sgpr=48, accum=256)
```

```python
from common import *

SLOT = 24576
CONST3 = 6 * SLOT
K3_LDS = CONST3 + 4096


def gen_k3(A):
    name = 'k3_ffn1_kernel'
    kernel_begin(A, name)
    vm = VM(A)
    A('''
    s_cmp_ge_u32 s2, 240
    s_cbranch_scc1 K3_END
    s_load_dwordx4 s[4:7], s[0:1], 40
    s_load_dwordx2 s[8:9], s[0:1], 96
    v_lshrrev_b32 v2, 6, v0
    v_and_b32 v1, 63, v0
    v_readfirstlane_b32 s40, v2
    s_mul_i32 s41, s2, 4370
    s_lshr_b32 s41, s41, 16
    s_mul_i32 s42, s41, 15
    s_sub_u32 s42, s2, s42
    s_waitcnt lgkmcnt(0)
    ''')
    srd(A, 12, 8, 2048 * 1024, WS_X1)
    srd(A, 16, 4, 512 * 2752)
    srd(A, 20, 6, 512 * 2752)
    srd(A, 24, 8, 12288, WS_MODF)
    srd(A, 28, 8, 2048 * 64, WS_STATS)
    srd(A, 32, 8, 2048 * 2752, WS_HH)
    A('''
    v_and_b32 v3, 15, v1
    v_lshrrev_b32 v4, 4, v1
    v_lshlrev_b32 v5, 4, v1
    s_lshl_b32 s43, s40, 10
    s_add_u32 s44, s43, %d
    s_add_u32 s43, s43, 6144
    s_mov_b32 m0, s44
    buffer_load_dwordx4 v5, s[24:27], s43 offen lds
    ''' % CONST3)
    vm.issue('pA')
    ST = 192
    A('''
    v_lshlrev_b32 v6, 6, v3
    s_lshl_b32 s43, s41, 13
    s_lshl_b32 s44, s40, 11
    s_add_u32 s43, s43, s44
    ''')
    for f in range(2):
        for q in range(4):
            A('buffer_load_dwordx4 %s, v6, s[28:31], s43 offen offset:%d' % (v(ST + f * 16 + q * 4, 4), f * 1024 + q * 16))
            vm.issue('pA')
    for j in range(3):
        A('''
        v_add_u32 v12, %d, v1
        v_mul_u32_u24 v13, 43691, v12
        v_lshrrev_b32 v13, 19, v13
        v_mul_u32_u24 v14, 12, v13
        v_sub_u32 v14, v12, v14
        v_lshrrev_b32 v15, 1, v14
        v_and_b32 v14, 1, v14
        v_lshrrev_b32 v16, 3, v13
        v_xor_b32 v15, v15, v16
        v_mul_u32_u24 v13, 2752, v13
        v_lshl_add_u32 v13, v15, 5, v13
        v_lshl_add_u32 %s, v14, 4, v13
        ''' % (j * 64, v(8 + j)))
    A('''
    v_lshlrev_b32 v6, 10, v3
    v_lshl_add_u32 v6, v4, 4, v6
    v_add_u32 v7, 16384, v6
    s_lshl_b32 s46, s41, 17
    s_lshl_b32 s43, s40, 15
    s_add_u32 s46, s46, s43
    s_mul_i32 s47, s40, %d
    s_mul_i32 s43, s42, 192
    s_add_u32 s47, s47, s43
    s_mul_i32 s48, s40, 3072
    ''' % (16 * 2752))
    AR = 64

    def load_chunk(c, tag):
        slot = c % 6
        A('s_add_u32 s43, s47, %d' % (c * 64 * 2752))
        for mat in range(2):
            for j in range(3):
                A('s_add_u32 s44, s48, %d' % (slot * SLOT + mat * 12288 + j * 1024))
                A('s_mov_b32 m0, s44')
                A('buffer_load_dwordx4 %s, %s, s43 offen lds' % (v(8 + j), 's[16:19]' if mat == 0 else 's[20:23]'))
                vm.issue(tag)

    def load_A(ks, tag):
        for f in range(2):
            A('buffer_load_dwordx4 %s, %s, s[12:15], s46 offen offset:%d' % (v(AR + (ks * 2 + f) * 4, 4), v(6 + f), ks * 64))
            vm.issue(tag)
    for c in range(6):
        tag = 'pA' if c < 3 else 'pB'
        load_chunk(c, tag)
        load_A(2 * c, tag)
        load_A(2 * c + 1, tag)
    A('''
    v_lshrrev_b32 v12, 2, v3
    v_lshl_add_u32 v12, v4, 3, v12
    v_mul_u32_u24 v12, 192, v12
    v_and_b32 v13, 3, v3
    v_lshl_add_u32 v12, v13, 3, v12
    v_and_b32 v13, 1, v4
    v_lshlrev_b32 v13, 5, v13
    v_add_u32 v16, v12, v13
    v_sub_u32 v17, v12, v13
    v_add_u32 v17, 32, v17
    v_add_u32 v18, %d, v16
    v_add_u32 v19, %d, v17
    v_add_u32 v20, %d, v16
    v_add_u32 v21, %d, v17
    v_lshlrev_b32 v22, 5, v4
    v_add_u32 v22, %d, v22
    ''' % (2 * SLOT, 2 * SLOT, 4 * SLOT, 4 * SLOT, CONST3))
    for i in range(96):
        A('v_accvgpr_write_b32 %s, 0' % a(i))
    vm.wait('pA')
    A('s_barrier')
    for f in range(2):
        b = ST + f * 16
        sm, t0, t1 = 28, 29, 30
        A('v_add_f32 %s, %s, %s' % (v(sm), v(b), v(b + 2)))
        for i in range(2, 8):
            A('v_add_f32 %s, %s, %s' % (v(sm), v(sm), v(b + 2 * i)))
        A('v_mul_f32 %s, 0x3b000000, %s' % (v(sm), v(sm)))
        A('v_add_f32 %s, %s, %s' % (v(t1), v(b + 1), v(b + 3)))
        for i in range(2, 8):
            A('v_add_f32 %s, %s, %s' % (v(t1), v(t1), v(b + 2 * i + 1)))
        A('v_mov_b32 v31, 0')
        for i in range(8):
            A('v_mul_f32 %s, 0x3c800000, %s' % (v(t0), v(b + 2 * i)))
            A('v_sub_f32 %s, %s, %s' % (v(t0), v(t0), v(sm)))
            A('v_fmac_f32 v31, %s, %s' % (v(t0), v(t0)))
        A('v_mov_b32 %s, 0x42800000' % v(t0))
        A('v_fmac_f32 %s, v31, %s' % (v(t1), v(t0)))
        A('v_mul_f32 %s, 0x3b000000, %s' % (v(t1), v(t1)))
        bf16r(A, sm, sm)
        bf16r(A, t1, t1)
        A('v_add_f32 %s, 0x3727c5ac, %s' % (v(t1), v(t1)))
        bf16r(A, t1, t1)
        A('v_sqrt_f32 %s, %s' % (v(t1), v(t1)))
        bf16r(A, t1, t1)
        A('v_rcp_f32 %s, %s' % (v(24 + f), v(t1)))
        A('v_mul_f32 %s, %s, %s' % (v(26 + f), v(sm), v(24 + f)))
        A('v_sub_f32 %s, 0, %s' % (v(26 + f), v(26 + f)))
    CB = 32
    BB = 192
    TMP = 240

    def read_consts(ks):
        c = CB + (ks & 1) * 16
        A('ds_read_b128 %s, v22 offset:%d' % (v(c, 4), ks * 128))
        A('ds_read_b128 %s, v22 offset:%d' % (v(c + 4, 4), ks * 128 + 16))
        A('ds_read_b128 %s, v22 offset:%d' % (v(c + 8, 4), ks * 128 + 2048))
        A('ds_read_b128 %s, v22 offset:%d' % (v(c + 12, 4), ks * 128 + 2064))

    def read_B(ks, mat):
        bb = BB + mat * 24
        slot = (ks // 2) % 6
        wd = slot // 2
        for b in range(6):
            base = 16 + 2 * wd + (b % 2)
            for half in range(2):
                off = (slot % 2) * SLOT + mat * 12288 + (ks % 2) * 6144 + half * 768 + (b & ~1) * 32
                A('ds_read_b64_tr_b16 %s, %s offset:%d' % (v(bb + b * 4 + half * 2, 2), v(base), off))

    def procA_instrs(ks):
        c = CB + (ks & 1) * 16
        L = []
        for f in range(2):
            R = AR + (ks * 2 + f) * 4
            for d in range(4):
                t = TMP + ((f * 4 + d) % 4) * 2
                L.append('v_lshlrev_b32 %s, 16, %s' % (v(t), v(R + d)))
                L.append('v_and_b32 %s, 0xffff0000, %s' % (v(t + 1), v(R + d)))
                L.append('v_fma_f32 %s, %s, %s, %s' % (v(t), v(t), v(24 + f), v(26 + f)))
                L.append('v_fma_f32 %s, %s, %s, %s' % (v(t + 1), v(t + 1), v(24 + f), v(26 + f)))
                L.append('v_fma_f32 %s, %s, %s, %s' % (v(t), v(t), v(c + 8 + 2 * d), v(c + 2 * d)))
                L.append('v_fma_f32 %s, %s, %s, %s' % (v(t + 1), v(t + 1), v(c + 9 + 2 * d), v(c + 1 + 2 * d)))
                L.append('v_cvt_pk_bf16_f32 %s, %s, %s' % (v(R + d), v(t), v(t + 1)))
        return L

    def mfma_instrs(ks, mat):
        bb = BB + mat * 24
        L = []
        for b in range(6):
            for f in range(2):
                R = AR + (ks * 2 + f) * 4
                acc = a((f * 12 + mat * 6 + b) * 4, 4)
                L.append('v_mfma_f32_16x16x32_bf16 %s, %s, %s, %s' % (acc, v(bb + b * 4, 4), v(R, 4), acc))
        return L

    def interleave(M, V):
        vi = 0
        for mi, m in enumerate(M):
            A(m)
            n = (len(V) * (mi + 1)) // len(M) - vi
            for _ in range(n):
                A(V[vi])
                vi += 1
    read_consts(0)
    read_consts(1)
    read_B(0, 0)
    A('s_waitcnt lgkmcnt(12)')
    for ins in procA_instrs(0):
        A(ins)
    for ks in range(16):
        if ks == 5:
            vm.wait('pB')
            A('s_barrier')
            load_chunk(6, 'pC')
            load_chunk(7, 'pC')
            for k2 in range(12, 16):
                load_A(k2, 'pC')
        if ks == 11:
            vm.wait('pC')
            A('s_barrier')
        V = procA_instrs(ks + 1) if ks + 1 < 16 else []
        h = len(V) // 2
        A('s_waitcnt lgkmcnt(0)')
        read_B(ks, 1)
        interleave(mfma_instrs(ks, 0), V[:h])
        A('s_waitcnt lgkmcnt(0)')
        if ks + 1 < 16:
            read_B(ks + 1, 0)
        interleave(mfma_instrs(ks, 1), V[h:])
        if ks + 2 < 16:
            read_consts(ks + 2)
    A('''
    s_mov_b32 s50, 0xc0135761
    s_mov_b32 s51, 0xbdd2d3e8
    v_mul_u32_u24 v12, 2752, v3
    v_and_b32 v13, 1, v4
    v_lshl_add_u32 v12, v13, 5, v12
    v_lshrrev_b32 v13, 1, v4
    v_lshl_add_u32 v12, v13, 4, v12
    v_add_u32 v13, %d, v12
    s_mul_i32 s43, s41, %d
    s_mul_i32 s44, s40, %d
    s_add_u32 s43, s43, s44
    s_mul_i32 s44, s42, 192
    s_add_u32 s43, s43, s44
    ''' % (16 * 2752, 128 * 2752, 32 * 2752))
    G, U, T, PK = 64, 68, 72, 96
    for jp in range(3):
        if jp == 1:
            A('s_cmp_eq_u32 s42, 14')
            A('s_cbranch_scc1 K3_END')
        for f in range(2):
            for jj in range(2):
                j = jp * 2 + jj
                ag, au = (f * 12 + j) * 4, (f * 12 + 6 + j) * 4
                for r in range(4):
                    A('v_accvgpr_read_b32 %s, %s' % (v(G + r), a(ag + r)))
                for r in range(4):
                    A('v_accvgpr_read_b32 %s, %s' % (v(U + r), a(au + r)))
                A('v_cvt_pk_bf16_f32 %s, %s, %s' % (v(T), v(G), v(G + 1)))
                A('v_cvt_pk_bf16_f32 %s, %s, %s' % (v(T + 1), v(G + 2), v(G + 3)))
                A('v_cvt_pk_bf16_f32 %s, %s, %s' % (v(T + 2), v(U), v(U + 1)))
                A('v_cvt_pk_bf16_f32 %s, %s, %s' % (v(T + 3), v(U + 2), v(U + 3)))
                unpack(A, G, G + 1, T)
                unpack(A, G + 2, G + 3, T + 1)
                unpack(A, U, U + 1, T + 2)
                unpack(A, U + 2, U + 3, T + 3)
                E = T + 4
                for r in range(4):
                    A('v_mul_f32 %s, %s, %s' % (v(E + r), v(G + r), v(G + r)))
                for r in range(4):
                    A('v_mov_b32 %s, s50' % v(E + 4 + r))
                for r in range(4):
                    A('v_fmac_f32 %s, s51, %s' % (v(E + 4 + r), v(E + r)))
                for r in range(4):
                    A('v_mul_f32 %s, %s, %s' % (v(E + r), v(E + 4 + r), v(G + r)))
                for r in range(4):
                    A('v_exp_f32 %s, %s' % (v(E + r), v(E + r)))
                for r in range(4):
                    A('v_add_f32 %s, 1.0, %s' % (v(E + r), v(E + r)))
                for r in range(4):
                    A('v_rcp_f32 %s, %s' % (v(E + r), v(E + r)))
                for r in range(4):
                    A('v_mul_f32 %s, %s, %s' % (v(G + r), v(G + r), v(E + r)))
                A('v_cvt_pk_bf16_f32 %s, %s, %s' % (v(T), v(G), v(G + 1)))
                A('v_cvt_pk_bf16_f32 %s, %s, %s' % (v(T + 1), v(G + 2), v(G + 3)))
                unpack(A, G, G + 1, T)
                unpack(A, G + 2, G + 3, T + 1)
                for r in range(4):
                    A('v_mul_f32 %s, %s, %s' % (v(G + r), v(G + r), v(U + r)))
                A('v_cvt_pk_bf16_f32 %s, %s, %s' % (v(PK + f * 4 + jj * 2), v(G), v(G + 1)))
                A('v_cvt_pk_bf16_f32 %s, %s, %s' % (v(PK + f * 4 + jj * 2 + 1), v(G + 2), v(G + 3)))
            p = PK + f * 4
            A('v_permlane16_swap_b32 %s, %s' % (v(p), v(p + 2)))
            A('v_permlane16_swap_b32 %s, %s' % (v(p + 1), v(p + 3)))
            A('buffer_store_dwordx4 %s, %s, s[32:35], s43 offen offset:%d' % (v(p, 4), v(12 + f), jp * 64))
            A('s_nop 1')
    A.label('K3_END')
    A('s_endpgm')
    return dict(name=name, grid=240, block=256, lds=K3_LDS, vgpr=256 + 96, sgpr=56, accum=256)
```

```python
from common import *

RSTRIDE = 272
RWAVE = 64 * RSTRIDE
K4_LDS = 131072


def gen_k4(A):
    name = 'k4_ffn2_kernel'
    kernel_begin(A, name)
    vm = VM(A)
    A('''
    s_cmp_ge_u32 s2, 256
    s_cbranch_scc1 K4_END
    s_load_dwordx2 s[4:5], s[0:1], 56
    s_load_dwordx2 s[6:7], s[0:1], 80
    s_load_dwordx2 s[8:9], s[0:1], 96
    v_lshrrev_b32 v2, 6, v0
    v_and_b32 v1, 63, v0
    v_readfirstlane_b32 s40, v2
    s_lshr_b32 s41, s2, 3
    s_and_b32 s42, s2, 7
    s_waitcnt lgkmcnt(0)
    ''')
    srd(A, 12, 8, 2048 * 2752, WS_HH)
    srd(A, 16, 4, 1376 * 1024)
    srd(A, 20, 8, 2048 * 1024, WS_X1)
    srd(A, 24, 8, 12288, WS_MODF)
    srd(A, 28, 6, 2048 * 1024)
    A('''
    v_and_b32 v3, 15, v1
    v_lshrrev_b32 v4, 4, v1
    v_mul_u32_u24 v5, 2752, v3
    v_lshl_add_u32 v5, v4, 4, v5
    v_add_u32 v6, %d, v5
    v_add_u32 v7, %d, v5
    v_add_u32 v8, %d, v5
    s_mul_i32 s43, s41, %d
    s_mul_i32 s44, s40, 704
    s_add_u32 s43, s43, s44
    ''' % (16 * 2752, 32 * 2752, 48 * 2752, 64 * 2752))
    A('''
    v_lshrrev_b32 v12, 3, v1
    v_and_b32 v13, 7, v1
    v_lshrrev_b32 v14, 1, v13
    v_and_b32 v13, 1, v13
    v_bfe_u32 v15, v12, 1, 1
    v_xor_b32 v14, v14, v15
    v_lshlrev_b32 v12, 10, v12
    v_lshl_add_u32 v12, v13, 4, v12
    v_lshl_add_u32 v10, v14, 5, v12
    v_xor_b32 v14, 2, v14
    v_lshl_add_u32 v11, v14, 5, v12
    s_mul_i32 s45, s40, %d
    s_lshl_b32 s44, s42, 7
    s_add_u32 s45, s45, s44
    s_lshl_b32 s46, s40, 15
    ''' % (11 * 32768))
    AR = 64

    def load_k(j):
        slot = j % 8
        for i in range(4):
            A('s_add_u32 s47, s45, %d' % (j * 32768 + i * 8192))
            A('s_add_u32 s48, s46, %d' % (slot * 4096 + i * 1024))
            A('s_mov_b32 m0, s48')
            A('buffer_load_dwordx4 %s, s[16:19], s47 offen lds' % v(10 + (i & 1)))
            vm.issue('k%d' % j)
        for rf in range(4):
            A('buffer_load_dwordx4 %s, %s, s[12:15], s43 offen offset:%d' % (a(AR + (j * 4 + rf) * 4, 4), v(5 + rf), j * 64))
            vm.issue('k%d' % j)
    for j in range(8):
        load_k(j)
    A('''
    v_lshrrev_b32 v16, 2, v0
    v_and_b32 v17, 3, v0
    v_lshlrev_b32 v18, 10, v16
    v_lshl_add_u32 v18, v17, 5, v18
    s_lshl_b32 s49, s41, 16
    s_lshl_b32 s44, s42, 7
    s_add_u32 s49, s49, s44
    v_lshlrev_b32 v19, 6, v17
    s_lshl_b32 s50, s42, 8
    s_add_u32 s50, s50, 10240
    ''')
    A('''
    v_lshrrev_b32 v12, 2, v3
    v_lshl_add_u32 v12, v4, 3, v12
    v_lshlrev_b32 v12, 7, v12
    v_and_b32 v13, 3, v3
    v_lshl_add_u32 v12, v13, 3, v12
    v_add_u32 v12, s46, v12
    v_lshrrev_b32 v13, 3, v3
    v_and_b32 v14, 1, v4
    v_lshl_add_u32 v13, v14, 1, v13
    ''')
    for cf in range(4):
        A('v_xor_b32 v14, %d, v13' % cf)
        A('v_lshl_add_u32 %s, v14, 5, v12' % v(20 + cf))
    for i in range(64):
        A('v_accvgpr_write_b32 %s, 0' % a(i))
    WF = 32

    def read_w(j):
        slot = j % 8
        for cf in range(4):
            for half in range(2):
                A('ds_read_b64_tr_b16 %s, %s offset:%d' % (v(WF + (j & 1) * 16 + cf * 4 + half * 2, 2), v(20 + cf), slot * 4096 + half * 512))
    vm.wait('k0')
    read_w(0)
    for j in range(11):
        if j == 10:
            A('s_cmp_eq_u32 s40, 3')
            A('s_cbranch_scc1 K4_DONE')
        A('s_waitcnt lgkmcnt(0)')
        if j + 8 <= 10:
            load_k(j + 8)
        if j + 1 < 11:
            vm.wait('k%d' % (j + 1))
            read_w(j + 1)
        for rf in range(4):
            for cf in range(4):
                acc = a((rf * 4 + cf) * 4, 4)
                A('v_mfma_f32_16x16x32_bf16 %s, %s, %s, %s' % (acc, v(WF + (j & 1) * 16 + cf * 4, 4), a(AR + (j * 4 + rf) * 4, 4), acc))
    A.label('K4_DONE')
    A('s_nop 7')
    XR, GA = 160, 168
    A('buffer_load_dwordx4 %s, v18, s[20:23], s49 offen' % v(XR, 4))
    A('buffer_load_dwordx4 %s, v18, s[20:23], s49 offen offset:16' % v(XR + 4, 4))
    for q in range(4):
        A('buffer_load_dwordx4 %s, v19, s[24:27], s50 offen offset:%d' % (v(GA + q * 4, 4), q * 16))
    A('''
    s_waitcnt lgkmcnt(0)
    s_barrier
    v_mul_u32_u24 v12, %d, v3
    v_lshl_add_u32 v12, v4, 4, v12
    s_mul_i32 s44, s40, %d
    v_add_u32 v12, s44, v12
    ''' % (RSTRIDE, RWAVE))
    for rf in range(4):
        for cf in range(4):
            A('ds_write_b128 v12, %s offset:%d' % (a((rf * 4 + cf) * 4, 4), rf * 16 * RSTRIDE + cf * 64))
    A('''
    s_waitcnt lgkmcnt(0)
    s_barrier
    v_mul_u32_u24 v12, %d, v16
    v_lshl_add_u32 v12, v17, 6, v12
    ''' % RSTRIDE)
    Y = 64
    for w in range(4):
        for j in range(4):
            A('ds_read_b128 %s, v12 offset:%d' % (v(Y + w * 16 + j * 4, 4), w * RWAVE + j * 16))
    A('s_waitcnt lgkmcnt(0)')
    for i in range(16):
        A('v_add_f32 %s, %s, %s' % (v(Y + i), v(Y + i), v(Y + 16 + i)))
        A('v_add_f32 %s, %s, %s' % (v(Y + 32 + i), v(Y + 32 + i), v(Y + 48 + i)))
    for i in range(16):
        A('v_add_f32 %s, %s, %s' % (v(Y + i), v(Y + i), v(Y + 32 + i)))
    P = 128
    for d in range(8):
        A('v_cvt_pk_bf16_f32 %s, %s, %s' % (v(P + d), v(Y + 2 * d), v(Y + 2 * d + 1)))
    for d in range(8):
        unpack(A, Y + 2 * d, Y + 2 * d + 1, P + d)
    A('s_waitcnt vmcnt(0)')
    for i in range(16):
        A('v_mul_f32 %s, %s, %s' % (v(Y + i), v(Y + i), v(GA + i)))
    for d in range(8):
        A('v_cvt_pk_bf16_f32 %s, %s, %s' % (v(P + d), v(Y + 2 * d), v(Y + 2 * d + 1)))
    for d in range(8):
        unpack(A, Y + 2 * d, Y + 2 * d + 1, P + d)
    XF = 96
    for d in range(8):
        unpack(A, XF + 2 * d, XF + 2 * d + 1, XR + d)
    for i in range(16):
        A('v_add_f32 %s, %s, %s' % (v(Y + i), v(Y + i), v(XF + i)))
    for d in range(8):
        A('v_cvt_pk_bf16_f32 %s, %s, %s' % (v(P + d), v(Y + 2 * d), v(Y + 2 * d + 1)))
    A('buffer_store_dwordx4 %s, v18, s[28:31], s49 offen' % v(P, 4))
    A('buffer_store_dwordx4 %s, v18, s[28:31], s49 offen offset:16' % v(P + 4, 4))
    A.label('K4_END')
    A('s_endpgm')
    return dict(name=name, grid=256, block=256, lds=K4_LDS, vgpr=256 + 240, sgpr=56, accum=256)
```

```python
import sys
from common import *
from k0 import gen_k0
from k1 import gen_k1
from k2 import gen_k2
from k3 import gen_k3
from k4 import gen_k4

def build(out):
    A = Asm()
    infos = []
    for g in (gen_k0, gen_k1, gen_k2, gen_k3, gen_k4):
        infos.append(g(A))
    hdr = open('adaLN_cond__linear_kernel_hedgehog__glu_gated_geglu__prompt.s.ref').read().split('\n')
    head = [l for l in hdr if l.startswith(';') and '@launch' not in l and 'Override launch' not in l and 'grid=ceil' not in l]
    txt = '\n'.join(head) + '\n'
    for i in infos:
        txt += '; @launch kernel=%s grid=(%d,1,1) block=(%d,1,1) lds=%d\n' % (i['name'], i['grid'], i['block'], i['lds'])
    txt += '.amdgcn_target "amdgcn-amd-amdhsa--gfx950"\n.text\n'
    txt += A.text()
    txt += '.section .rodata,"a"\n'
    for i in infos:
        txt += '.p2align 6\n' + kernel_desc(i['name'], i['vgpr'], i['sgpr'], i['accum'])
    open(out, 'w').write(txt)

if __name__ == '__main__':
    build(sys.argv[1] if len(sys.argv) > 1 else 'adaLN_cond__linear_kernel_hedgehog__glu_gated_geglu__prompt.s')
```

```python
from asmlib import *

WS_XH = 0x000000
WS_X1 = 0x200000
WS_PHIQ = 0x400000
WS_HH = 0x800000
WS_MODF = 0xE00000
WS_KVACC = 0xE10000
WS_ZACC = 0xE20000
WS_STATS = 0xE30000
WS_MODB = 0xE08000
WS_X1S = 0x2000000

KA = dict(x=0, wqkv=8, wphi=16, wo=24, bx=32, wgate=40, wup=48, wdown=56, c=64, wmod=72, out=80, dbg=88, ws=96)

LOG2E = 0x3FB8AA3B


def srd(A, sd, sptr, nbytes, off=0):
    if off:
        A('s_add_u32 %s, %s, 0x%x' % (s(sd), s(sptr), off))
        A('s_addc_u32 %s, %s, 0' % (s(sd + 1), s(sptr + 1)))
    else:
        A('s_mov_b32 %s, %s' % (s(sd), s(sptr)))
        A('s_mov_b32 %s, %s' % (s(sd + 1), s(sptr + 1)))
    A('s_mov_b32 %s, 0x%x' % (s(sd + 2), nbytes))
    A('s_mov_b32 %s, 0x00020000' % s(sd + 3))


def kernel_begin(A, name):
    A.raw('.globl %s' % name)
    A.raw('.p2align 8')
    A.raw('.type %s,@function' % name)
    A.raw('%s:' % name)
    A.fence()


def kernel_desc(name, vgpr, sgpr, accum):
    return '''.amdhsa_kernel %s
  .amdhsa_next_free_vgpr %d
  .amdhsa_next_free_sgpr %d
  .amdhsa_accum_offset %d
  .amdhsa_group_segment_fixed_size 0
  .amdhsa_kernarg_size 104
  .amdhsa_user_sgpr_count 2
  .amdhsa_user_sgpr_kernarg_segment_ptr 1
  .amdhsa_system_sgpr_workgroup_id_x 1
.end_amdhsa_kernel
''' % (name, vgpr, sgpr, accum)


def bf16r(A, d, x):
    A('v_cvt_pk_bf16_f32 %s, %s, %s' % (v(d), v(x), v(x)))
    A('v_lshlrev_b32 %s, 16, %s' % (v(d), v(d)))


def unpack(A, lo, hi, src):
    A('v_lshlrev_b32 %s, 16, %s' % (v(lo), v(src)))
    A('v_and_b32 %s, 0xffff0000, %s' % (v(hi), v(src)))


def wave_allreduce(A, x, t, op='v_add_f32'):
    A('%s_dpp %s, %s, %s quad_perm:[1,0,3,2] row_mask:0xf bank_mask:0xf' % (op, v(t), v(x), v(x)))
    A('%s_dpp %s, %s, %s quad_perm:[2,3,0,1] row_mask:0xf bank_mask:0xf' % (op, v(x), v(t), v(t)))
    A('%s_dpp %s, %s, %s row_half_mirror row_mask:0xf bank_mask:0xf' % (op, v(t), v(x), v(x)))
    A('%s_dpp %s, %s, %s row_mirror row_mask:0xf bank_mask:0xf' % (op, v(x), v(t), v(t)))
    group_allreduce(A, x, t, op)


def group_allreduce(A, x, t, op):
    A('v_mov_b32 %s, %s' % (v(t), v(x)))
    A('v_permlane16_swap_b32 %s, %s' % (v(t), v(x)))
    A('%s %s, %s, %s' % (op, v(x), v(t), v(x)))
    A('v_mov_b32 %s, %s' % (v(t), v(x)))
    A('v_permlane32_swap_b32 %s, %s' % (v(t), v(x)))
    A('%s %s, %s, %s' % (op, v(x), v(t), v(x)))


class VM:
    def __init__(self, A):
        self.A = A
        self.tags = []

    def issue(self, tag, n=1):
        self.tags += [tag] * n

    def wait(self, tag):
        idx = max(i for i, t in enumerate(self.tags) if t == tag)
        n = len(self.tags) - 1 - idx
        assert n <= 63, n
        self.A('s_waitcnt vmcnt(%d)' % n)


import os
PROF = int(os.environ.get('PROF', '0'))
WS_PROF = 0x1000000


class Prof:
    def __init__(self, A, kidx):
        self.A, self.k, self.n = A, kidx, 0
        self.names = []

    def start(self):
        if not PROF:
            return
        A = self.A
        A('s_memrealtime s[96:97]')
        A('v_lshrrev_b32 v1, 6, v0')
        A('v_readfirstlane_b32 s59, v1')
        self.stamp('start')

    def stamp(self, name):
        if not PROF:
            return
        assert self.n < 16
        self.A('s_memtime s[%d:%d]' % (64 + 2 * self.n, 65 + 2 * self.n))
        self.n += 1
        self.names.append(name)

    def finish(self):
        if not PROF:
            return
        A = self.A
        A('s_waitcnt vmcnt(0)')
        self.stamp('end')
        A('s_memrealtime s[98:99]')
        A('s_load_dwordx2 s[100:101], s[0:1], 96')
        A('s_waitcnt lgkmcnt(0)')
        srd(A, 60, 100, 0x100000, WS_PROF + self.k * 0x100000)
        A('s_lshl_b32 s58, s2, 4')
        A('s_add_u32 s58, s58, s59')
        A('s_lshl_b32 s58, s58, 8')
        A('v_mov_b32 v2, 0')
        for i in range(18):
            A('v_mov_b32 v0, s%d' % (64 + 2 * i))
            A('v_mov_b32 v1, s%d' % (65 + 2 * i))
            A('buffer_store_dwordx2 v[0:1], v2, s[60:63], s58 offen offset:%d' % (i * 8))
            A('s_nop 2')
        print('PROF k%d:' % self.k, self.names)
```

```python
from common import *


def gen_k0(A):
    name = 'k0_prep_kernel'
    kernel_begin(A, name)
    A('''
    s_cmp_ge_u32 s2, 450
    s_cbranch_scc1 K0_END
    s_cmp_ge_u32 s2, 352
    s_cbranch_scc1 K0_PF
    s_load_dwordx2 s[4:5], s[0:1], 0
    s_load_dwordx4 s[8:11], s[0:1], 64
    s_load_dwordx2 s[6:7], s[0:1], 96
    s_waitcnt lgkmcnt(0)
    s_cmp_ge_u32 s2, 96
    s_cbranch_scc1 K0_XH
    ''')
    srd(A, 12, 8, 1024)
    srd(A, 16, 10, 512 * 6144)
    srd(A, 20, 6, 12288, WS_MODF)
    A('''
    v_and_b32 v1, 3, v0
    v_lshrrev_b32 v2, 2, v0
    v_lshlrev_b32 v3, 4, v2
    buffer_load_dwordx4 v[4:7], v3, s[12:15], 0 offen
    s_mov_b32 s24, 49152
    v_mul_lo_u32 v3, v2, s24
    v_lshl_add_u32 v3, v1, 4, v3
    s_lshl_b32 s25, s2, 6
    v_add_u32 v3, s25, v3
    ''')
    for i in range(8):
        A('s_mov_b32 s26, %d' % (i * 6144))
        A('buffer_load_dwordx4 %s, v3, s[16:19], s26 offen' % v(16 + 4 * i, 4))
    A('s_waitcnt vmcnt(8)')
    for d in range(4):
        unpack(A, 48 + 2 * d, 49 + 2 * d, 4 + d)
    A('s_mov_b32 s27, 0x%x' % (LOG2E | 0x80000000))
    for i in range(8):
        A('v_mul_f32 %s, s27, %s' % (v(56 + i), v(48 + i)))
    for i in range(8):
        A('v_exp_f32 %s, %s' % (v(56 + i), v(56 + i)))
    for i in range(8):
        A('v_add_f32 %s, 1.0, %s' % (v(56 + i), v(56 + i)))
    for i in range(8):
        A('v_rcp_f32 %s, %s' % (v(56 + i), v(56 + i)))
    for i in range(8):
        A('v_mul_f32 %s, %s, %s' % (v(48 + i), v(48 + i), v(56 + i)))
    for d in range(4):
        A('v_cvt_pk_bf16_f32 %s, %s, %s' % (v(56 + d), v(48 + 2 * d), v(49 + 2 * d)))
    for d in range(4):
        unpack(A, 48 + 2 * d, 49 + 2 * d, 56 + d)
    for j in range(8):
        A('v_mov_b32 %s, 0' % v(64 + j))
    for i in range(8):
        A('s_waitcnt vmcnt(%d)' % (7 - i))
        for d in range(4):
            unpack(A, 72 + 2 * d, 73 + 2 * d, 16 + 4 * i + d)
        for j in range(8):
            A('v_fmac_f32 %s, %s, %s' % (v(64 + j), v(48 + i), v(72 + j)))
    A('''
    v_lshlrev_b32 v3, 5, v0
    ds_write_b128 v3, v[64:67]
    ds_write_b128 v3, v[68:71] offset:16
    s_waitcnt lgkmcnt(0)
    s_barrier
    v_and_b32 v1, 31, v0
    v_lshrrev_b32 v2, 5, v0
    v_lshlrev_b32 v3, 10, v2
    v_lshl_add_u32 v3, v1, 2, v3
    ''')
    for i in range(8):
        A('ds_read_b32 %s, v3 offset:%d' % (v(64 + i), i * 128))
    A('s_waitcnt lgkmcnt(0)')
    A('''
    v_add_f32 v64, v64, v65
    v_add_f32 v66, v66, v67
    v_add_f32 v68, v68, v69
    v_add_f32 v70, v70, v71
    v_add_f32 v64, v64, v66
    v_add_f32 v68, v68, v70
    v_add_f32 v64, v64, v68
    v_lshlrev_b32 v3, 2, v0
    ds_write_b32 v3, v64 offset:8192
    s_waitcnt lgkmcnt(0)
    s_barrier
    v_readfirstlane_b32 s28, v0
    s_cmp_ge_u32 s28, 64
    s_cbranch_scc1 K0_END
    v_lshlrev_b32 v3, 2, v1
    ''')
    for i in range(8):
        A('ds_read_b32 %s, v3 offset:%d' % (v(64 + i), 8192 + i * 128))
    A('s_waitcnt lgkmcnt(0)')
    A('''
    v_add_f32 v64, v64, v65
    v_add_f32 v66, v66, v67
    v_add_f32 v68, v68, v69
    v_add_f32 v70, v70, v71
    v_add_f32 v64, v64, v66
    v_add_f32 v68, v68, v70
    v_add_f32 v64, v64, v68
    ''')
    bf16r(A, 64, 64)
    A('''
    s_lshr_b32 s28, s2, 4
    s_cmp_eq_u32 s28, 1
    s_cbranch_scc1 K0_PLUS1
    s_cmp_eq_u32 s28, 4
    s_cbranch_scc0 K0_STORE
    ''')
    A.label('K0_PLUS1')
    A('v_add_f32 v64, 1.0, v64')
    bf16r(A, 64, 64)
    A.label('K0_STORE')
    A('''
    s_lshl_b32 s28, s2, 7
    v_add_u32 v3, s28, v3
    buffer_store_dword v64, v3, s[20:23], 0 offen
    s_endpgm
    ''')
    A.label('K0_XH')
    A.fence()
    srd(A, 12, 4, 2048 * 1024)
    srd(A, 16, 6, 2048 * 1024, WS_XH)
    srd(A, 20, 6, 69632, WS_KVACC)
    A('''
    s_sub_u32 s24, s2, 96
    s_lshl_b32 s25, s24, 13
    v_lshrrev_b32 v1, 6, v0
    v_and_b32 v2, 63, v0
    v_lshlrev_b32 v1, 11, v1
    v_lshl_add_u32 v1, v2, 4, v1
    buffer_load_dwordx4 v[4:7], v1, s[12:15], s25 offen
    buffer_load_dwordx4 v[8:11], v1, s[12:15], s25 offen offset:1024
    s_cmp_ge_u32 s24, 17
    s_cbranch_scc1 K0_NOZERO
    v_mov_b32 v12, 0
    v_mov_b32 v13, 0
    v_mov_b32 v14, 0
    v_mov_b32 v15, 0
    v_lshlrev_b32 v2, 4, v0
    s_lshl_b32 s26, s24, 12
    buffer_store_dwordx4 v[12:15], v2, s[20:23], s26 offen
    ''')
    A.label('K0_NOZERO')
    A('s_waitcnt vmcnt(0)')
    R = [(4, 16, 32, 40), (8, 24, 33, 41)]
    for raw, f, st, t in R:
        for d in range(4):
            unpack(A, f + 2 * d, f + 2 * d + 1, raw + d)
    for raw, f, st, t in R:
        A('v_add_f32 %s, %s, %s' % (v(st), v(f), v(f + 1)))
        for i in range(2, 8):
            A('v_add_f32 %s, %s, %s' % (v(st), v(st), v(f + i)))
    for raw, f, st, t in R:
        wave_allreduce(A, st, t)
    A('s_mov_b32 s27, 0x3b000000')
    for raw, f, st, t in R:
        A('v_mul_f32 %s, s27, %s' % (v(st), v(st)))
        A('v_mov_b32 %s, 0' % v(st + 2))
        for i in range(8):
            A('v_sub_f32 %s, %s, %s' % (v(t), v(f + i), v(st)))
            A('v_fmac_f32 %s, %s, %s' % (v(st + 2), v(t), v(t)))
    for raw, f, st, t in R:
        wave_allreduce(A, st + 2, t)
    A('s_mov_b32 s28, 0x3727c5ac')
    for raw, f, st, t in R:
        A('v_mul_f32 %s, s27, %s' % (v(st + 2), v(st + 2)))
        bf16r(A, st, st)
        bf16r(A, st + 2, st + 2)
        A('v_add_f32 %s, s28, %s' % (v(st + 2), v(st + 2)))
        bf16r(A, st + 2, st + 2)
        A('v_sqrt_f32 %s, %s' % (v(st + 2), v(st + 2)))
        bf16r(A, st + 2, st + 2)
        A('v_rcp_f32 %s, %s' % (v(st + 2), v(st + 2)))
    for raw, f, st, t in R:
        for i in range(8):
            A('v_sub_f32 %s, %s, %s' % (v(f + i), v(f + i), v(st)))
        for d in range(4):
            A('v_cvt_pk_bf16_f32 %s, %s, %s' % (v(raw + d), v(f + 2 * d), v(f + 2 * d + 1)))
        for d in range(4):
            unpack(A, f + 2 * d, f + 2 * d + 1, raw + d)
        for i in range(8):
            A('v_mul_f32 %s, %s, %s' % (v(f + i), v(f + i), v(st + 2)))
        for d in range(4):
            A('v_cvt_pk_bf16_f32 %s, %s, %s' % (v(raw + d), v(f + 2 * d), v(f + 2 * d + 1)))
    A('''
    v_lshrrev_b32 v1, 6, v0
    v_and_b32 v2, 63, v0
    v_lshlrev_b32 v1, 5, v1
    v_lshrrev_b32 v3, 2, v2
    v_lshl_add_u32 v1, v3, 10, v1
    v_and_b32 v3, 3, v2
    v_lshl_add_u32 v1, v3, 8, v1
    s_lshr_b32 s25, s24, 1
    s_lshl_b32 s25, s25, 14
    s_and_b32 s26, s24, 1
    s_lshl_b32 s26, s26, 7
    s_add_u32 s25, s25, s26
    buffer_store_dwordx4 v[4:7], v1, s[16:19], s25 offen
    buffer_store_dwordx4 v[8:11], v1, s[16:19], s25 offen offset:16
    ''')
    A('s_endpgm')
    A.label('K0_PF')
    A.fence()
    A('''
    s_sub_u32 s24, s2, 352
    s_mov_b32 s25, 8
    s_mov_b32 s26, %d
    s_cmp_ge_u32 s24, 24
    s_cbranch_scc0 K0_PFGO
    s_sub_u32 s24, s24, 24
    s_mov_b32 s25, 24
    s_mov_b32 s26, %d
    s_cmp_ge_u32 s24, 8
    s_cbranch_scc0 K0_PFGO
    s_sub_u32 s24, s24, 8
    s_mov_b32 s25, 40
    s_mov_b32 s26, %d
    s_cmp_ge_u32 s24, 22
    s_cbranch_scc0 K0_PFGO
    s_sub_u32 s24, s24, 22
    s_mov_b32 s25, 48
    s_cmp_ge_u32 s24, 22
    s_cbranch_scc0 K0_PFGO
    s_sub_u32 s24, s24, 22
    s_mov_b32 s25, 56
    ''' % (512 * 3072, 512 * 1024, 1376 * 1024))
    A.label('K0_PFGO')
    A('''
    s_add_u32 s4, s0, s25
    s_addc_u32 s5, s1, 0
    s_load_dwordx2 s[12:13], s[4:5], 0
    s_mov_b32 s14, s26
    s_mov_b32 s15, 0x00020000
    s_lshl_b32 s24, s24, 16
    v_lshlrev_b32 v1, 4, v0
    s_waitcnt lgkmcnt(0)
    ''')
    for i in range(16):
        A('buffer_load_dwordx4 %s, v1, s[12:15], s24 offen' % v(16 + 4 * i, 4))
        if i < 15:
            A('s_add_u32 s24, s24, 4096')
    A('s_waitcnt vmcnt(0)')
    A.label('K0_END')
    A('s_endpgm')
    return dict(name=name, grid=450, block=256, lds=9216, vgpr=80, sgpr=32, accum=80)
```

```python
from common import *

B_BYTES = 98304
CONST_OFF = 98304
RED_OFF = 102400
ZRED_OFF = RED_OFF + 16384
K1_LDS = ZRED_OFF + 16384


def softmax_pm(A, P, T, out, s_l2e, s_nl2e):
    c0, c1, mx, mn, t0, t1 = T, T + 1, T + 2, T + 3, T + 4, T + 5
    F = T + 6
    sp, sn = T + 10, T + 11
    A('v_cvt_pk_bf16_f32 %s, %s, %s' % (v(c0), v(P), v(P + 1)))
    A('v_cvt_pk_bf16_f32 %s, %s, %s' % (v(c1), v(P + 2), v(P + 3)))
    unpack(A, P, P + 1, c0)
    unpack(A, P + 2, P + 3, c1)
    A('v_max3_f32 %s, %s, %s, %s' % (v(mx), v(P), v(P + 1), v(P + 2)))
    A('v_min3_f32 %s, %s, %s, %s' % (v(mn), v(P), v(P + 1), v(P + 2)))
    A('v_max_f32 %s, %s, %s' % (v(mx), v(mx), v(P + 3)))
    A('v_min_f32 %s, %s, %s' % (v(mn), v(mn), v(P + 3)))
    for sw in ('v_permlane16_swap_b32', 'v_permlane32_swap_b32'):
        A('v_mov_b32 %s, %s' % (v(t0), v(mx)))
        A('v_mov_b32 %s, %s' % (v(t1), v(mn)))
        A('%s %s, %s' % (sw, v(t0), v(mx)))
        A('%s %s, %s' % (sw, v(t1), v(mn)))
        A('v_max_f32 %s, %s, %s' % (v(mx), v(t0), v(mx)))
        A('v_min_f32 %s, %s, %s' % (v(mn), v(t1), v(mn)))
    A('v_mul_f32 %s, %s, %s' % (v(mx), s_nl2e, v(mx)))
    A('v_mul_f32 %s, %s, %s' % (v(mn), s_l2e, v(mn)))
    for r in range(4):
        A('v_fma_f32 %s, %s, %s, %s' % (v(F + r), v(P + r), s_nl2e, v(mn)))
    for r in range(4):
        A('v_fma_f32 %s, %s, %s, %s' % (v(P + r), v(P + r), s_l2e, v(mx)))
    for r in range(4):
        A('v_exp_f32 %s, %s' % (v(P + r), v(P + r)))
    for r in range(4):
        A('v_exp_f32 %s, %s' % (v(F + r), v(F + r)))
    A('v_add_f32 %s, %s, %s' % (v(sp), v(P), v(P + 1)))
    A('v_add_f32 %s, %s, %s' % (v(sn), v(F), v(F + 1)))
    A('v_add_f32 %s, %s, %s' % (v(t0), v(P + 2), v(P + 3)))
    A('v_add_f32 %s, %s, %s' % (v(t1), v(F + 2), v(F + 3)))
    A('v_add_f32 %s, %s, %s' % (v(sp), v(sp), v(t0)))
    A('v_add_f32 %s, %s, %s' % (v(sn), v(sn), v(t1)))
    for sw in ('v_permlane16_swap_b32', 'v_permlane32_swap_b32'):
        A('v_mov_b32 %s, %s' % (v(t0), v(sp)))
        A('v_mov_b32 %s, %s' % (v(t1), v(sn)))
        A('%s %s, %s' % (sw, v(t0), v(sp)))
        A('%s %s, %s' % (sw, v(t1), v(sn)))
        A('v_add_f32 %s, %s, %s' % (v(sp), v(t0), v(sp)))
        A('v_add_f32 %s, %s, %s' % (v(sn), v(t1), v(sn)))
    A('v_rcp_f32 %s, %s' % (v(sp), v(sp)))
    A('v_rcp_f32 %s, %s' % (v(sn), v(sn)))
    for r in range(4):
        A('v_mul_f32 %s, %s, %s' % (v(P + r), v(P + r), v(sp)))
    for r in range(4):
        A('v_mul_f32 %s, %s, %s' % (v(F + r), v(F + r), v(sn)))
    A('v_cvt_pk_bf16_f32 %s, %s, %s' % (v(out), v(P), v(P + 1)))
    A('v_cvt_pk_bf16_f32 %s, %s, %s' % (v(out + 1), v(P + 2), v(P + 3)))
    A('v_cvt_pk_bf16_f32 %s, %s, %s' % (v(out + 2), v(F), v(F + 1)))
    A('v_cvt_pk_bf16_f32 %s, %s, %s' % (v(out + 3), v(F + 2), v(F + 3)))


def gen_k1(A):
    name = 'k1_qkv_kernel'
    kernel_begin(A, name)
    pf = Prof(A, 1)
    A('''
    s_cmp_ge_u32 s2, 256
    s_cbranch_scc1 K1_END
    ''')
    pf.start()
    A('''
    s_load_dwordx4 s[4:7], s[0:1], 8
    s_load_dwordx2 s[8:9], s[0:1], 96
    v_lshrrev_b32 v2, 6, v0
    v_and_b32 v1, 63, v0
    v_readfirstlane_b32 s36, v2
    s_bfe_u32 s37, s2, 0x20001
    s_lshl_b32 s37, s37, 2
    s_bfe_u32 s38, s2, 0x20003
    s_add_u32 s37, s37, s38
    s_and_b32 s38, s2, 1
    s_lshl_b32 s38, s38, 3
    s_lshr_b32 s39, s2, 5
    s_add_u32 s38, s38, s39
    s_mov_b32 s44, 0x%x
    s_mov_b32 s45, 0x%x
    s_waitcnt lgkmcnt(0)
    ''' % (LOG2E, LOG2E | 0x80000000))
    srd(A, 12, 4, 512 * 3072)
    srd(A, 16, 8, 2048 * 1024, WS_XH)
    srd(A, 20, 8, 12288, WS_MODF)
    srd(A, 24, 6, 32 * 512)
    srd(A, 28, 8, 2048 * 2048, WS_PHIQ)
    srd(A, 32, 8, 69632, WS_KVACC)
    A('''
    v_and_b32 v3, 15, v1
    v_lshrrev_b32 v4, 4, v1
    ''')
    A('''
    v_lshlrev_b32 v5, 4, v1
    s_lshl_b32 s39, s36, 10
    s_add_u32 s40, s39, %d
    s_mov_b32 m0, s40
    buffer_load_dwordx4 v5, s[20:23], s39 offen lds
    ''' % CONST_OFF)
    for t in range(3):
        A('''
        s_add_u32 s39, s36, %d
        s_mul_i32 s40, s39, 43691
        s_lshr_b32 s40, s40, 17
        s_mul_i32 s40, s40, 3
        s_sub_u32 s39, s39, s40
        s_lshl_b32 s39, s39, 6
        v_add_u32 v12, s39, v1
        v_mul_u32_u24 v13, 43691, v12
        v_lshrrev_b32 v13, 19, v13
        v_mul_u32_u24 v14, 12, v13
        v_sub_u32 v14, v12, v14
        v_lshrrev_b32 v15, 1, v14
        v_and_b32 v14, 1, v14
        v_lshrrev_b32 v16, 3, v13
        v_xor_b32 v15, v15, v16
        v_mul_u32_u24 v13, 3072, v13
        v_lshrrev_b32 v16, 1, v15
        v_lshl_add_u32 v13, v16, 10, v13
        v_and_b32 v16, 1, v15
        v_lshl_add_u32 v13, v16, 5, v13
        v_lshl_add_u32 %s, v14, 4, v13
        ''' % (t, v(8 + t)))
    A('''
    v_lshlrev_b32 v6, 4, v1
    s_lshl_b32 s46, s37, 17
    s_lshl_b32 s39, s36, 15
    s_add_u32 s46, s46, s39
    s_lshl_b32 s41, s38, 6
    ''')
    AR = 64
    pf.stamp('pre')
    for p in range(4):
        if p in (1, 2):
            pf.stamp('iss%d' % p)
        for ii in range(6):
            i = p * 6 + ii
            A('''
            s_add_u32 s39, s36, %d
            s_mul_i32 s40, s39, 43691
            s_lshr_b32 s40, s40, 17
            s_mul_i32 s40, s40, 49152
            s_add_u32 s40, s40, s41
            s_lshl_b32 s39, s39, 10
            s_mov_b32 m0, s39
            buffer_load_dwordx4 %s, s[12:15], s40 offen lds
            ''' % (4 * i, v(8 + i % 3)))
        for ks in range(4 * p, 4 * p + 4):
            for f in range(2):
                A('s_add_u32 s39, s46, %d' % (f * 16384 + ks * 1024))
                A('buffer_load_dwordx4 %s, v6, s[16:19], s39 offen' % v(AR + (ks * 2 + f) * 4, 4))
    pf.stamp('issued')
    A('''
    v_lshrrev_b32 v12, 2, v3
    v_lshl_add_u32 v12, v4, 3, v12
    v_mul_u32_u24 v12, 192, v12
    v_and_b32 v13, 3, v3
    v_lshl_add_u32 v12, v13, 3, v12
    v_and_b32 v13, 1, v4
    v_lshlrev_b32 v13, 5, v13
    v_add_u32 v16, v12, v13
    v_sub_u32 v17, v12, v13
    v_add_u32 v17, 32, v17
    v_add_u32 v18, 49152, v16
    v_add_u32 v19, 49152, v17
    v_lshlrev_b32 v20, 5, v4
    v_add_u32 v20, %d, v20
    ''' % CONST_OFF)
    for i in range(48):
        A('v_accvgpr_write_b32 %s, 0' % a(i))
    CB = 32
    BB = 192
    TMP = 240

    def read_consts(ks):
        c = CB + (ks & 1) * 16
        A('ds_read_b128 %s, v20 offset:%d' % (v(c, 4), ks * 128))
        A('ds_read_b128 %s, v20 offset:%d' % (v(c + 4, 4), ks * 128 + 16))
        A('ds_read_b128 %s, v20 offset:%d' % (v(c + 8, 4), ks * 128 + 2048))
        A('ds_read_b128 %s, v20 offset:%d' % (v(c + 12, 4), ks * 128 + 2064))

    def read_B(ks):
        bb = BB + (ks & 1) * 24
        for b in range(6):
            base = (16 if b % 2 == 0 else 17) + (2 if ks >= 8 else 0)
            for half in range(2):
                off = (ks % 8) * 6144 + half * 768 + (b & ~1) * 32
                A('ds_read_b64_tr_b16 %s, %s offset:%d' % (v(bb + b * 4 + half * 2, 2), v(base), off))

    def procA_instrs(ks):
        c = CB + (ks & 1) * 16
        L = []
        for f in range(2):
            R = AR + (ks * 2 + f) * 4
            for d in range(4):
                t = TMP + ((f * 4 + d) % 4) * 2
                L.append('v_lshlrev_b32 %s, 16, %s' % (v(t), v(R + d)))
                L.append('v_and_b32 %s, 0xffff0000, %s' % (v(t + 1), v(R + d)))
                L.append('v_fma_f32 %s, %s, %s, %s' % (v(t), v(t), v(c + 8 + 2 * d), v(c + 2 * d)))
                L.append('v_fma_f32 %s, %s, %s, %s' % (v(t + 1), v(t + 1), v(c + 9 + 2 * d), v(c + 1 + 2 * d)))
                L.append('v_cvt_pk_bf16_f32 %s, %s, %s' % (v(R + d), v(t), v(t + 1)))
        return L

    def mfma_instrs(ks):
        bb = BB + (ks & 1) * 24
        L = []
        for b in range(6):
            for f in range(2):
                R = AR + (ks * 2 + f) * 4
                acc = a((f * 6 + b) * 4, 4)
                if b < 4:
                    L.append('v_mfma_f32_16x16x32_bf16 %s, %s, %s, %s' % (acc, v(bb + b * 4, 4), v(R, 4), acc))
                else:
                    L.append('v_mfma_f32_16x16x32_bf16 %s, %s, %s, %s' % (acc, v(R, 4), v(bb + b * 4, 4), acc))
        return L

    pf.stamp('init')
    A('s_waitcnt vmcnt(42)')
    A('s_barrier')
    pf.stamp('p0')
    A('''
    v_lshlrev_b32 v21, 7, v4
    v_lshl_add_u32 v21, v3, 1, v21
    s_lshl_b32 s39, s38, 10
    ''')
    for hl in range(2):
        for j in range(4):
            A('buffer_load_ushort %s, v21, s[24:27], s39 offen offset:%d' % (v(248 + 4 * hl + j), hl * 512 + j * 32))
    read_consts(0)
    read_consts(1)
    read_B(0)
    A('s_waitcnt lgkmcnt(12)')
    for ins in procA_instrs(0):
        A(ins)
    waits = {3: 36, 7: 22, 11: 8}
    for ks in range(16):
        if ks in waits:
            pf.stamp('b4w%d' % ks)
            A('s_waitcnt vmcnt(%d)' % waits[ks])
            A('s_barrier')
            pf.stamp('w%d' % ks)
        A('s_waitcnt lgkmcnt(0)')
        if ks + 1 < 16:
            read_B(ks + 1)
        M = mfma_instrs(ks)
        V = procA_instrs(ks + 1) if ks + 1 < 16 else []
        vi = 0
        for mi, m in enumerate(M):
            A(m)
            n = (len(V) * (mi + 1)) // len(M) - vi
            for _ in range(n):
                A(V[vi])
                vi += 1
        if ks + 2 < 16:
            read_consts(ks + 2)
    pf.stamp('mfma_done')
    A('s_waitcnt vmcnt(0)')
    for q in range(4):
        A('v_lshl_or_b32 %s, %s, 16, %s' % (v(24 + q), v(249 + 2 * q), v(248 + 2 * q)))
    A('''
    v_lshlrev_b32 v12, 2, v4
    v_sub_u32 v12, v3, v12
    v_mov_b32 v28, 0
    v_mov_b32 v29, 0
    v_mov_b32 v13, 0x3f80
    v_mov_b32 v14, 0x3f800000
    v_cmp_eq_u32 vcc, 0, v12
    v_cndmask_b32 v28, v28, v13, vcc
    v_cmp_eq_u32 vcc, 1, v12
    v_cndmask_b32 v28, v28, v14, vcc
    v_cmp_eq_u32 vcc, 2, v12
    v_cndmask_b32 v29, v29, v13, vcc
    v_cmp_eq_u32 vcc, 3, v12
    v_cndmask_b32 v29, v29, v14, vcc
    v_mov_b32 v32, 0x3f803f80
    v_mov_b32 v33, 0x3f803f80
    v_mov_b32 v34, 0x3f803f80
    v_mov_b32 v35, 0x3f803f80
    ''')
    A('''
    v_lshlrev_b32 v22, 4, v1
    s_lshl_b32 s47, s46, 1
    s_lshl_b32 s39, s38, 11
    s_add_u32 s47, s47, s39
    v_lshlrev_b32 v23, 5, v1
    s_lshl_b32 s39, s36, 12
    v_add_u32 v23, s39, v23
    v_add_u32 v23, %d, v23
    ''' % RED_OFF)
    X = 64
    XB = 68
    P = 72
    OUT = 76
    T = 80
    KAP = 96
    KAN = 100
    VB = 104
    TP = 108
    TN = 112
    KV = 116
    for hl in range(2):
        for f in range(2):
            for typ in range(2):
                acc = (f * 6 + typ * 2 + hl) * 4
                for r in range(4):
                    A('v_accvgpr_read_b32 %s, %s' % (v(X + r), a(acc + r)))
                A('v_cvt_pk_bf16_f32 %s, %s, %s' % (v(XB), v(X), v(X + 1)))
                A('v_cvt_pk_bf16_f32 %s, %s, %s' % (v(XB + 1), v(X + 2), v(X + 3)))
                A('v_mfma_f32_16x16x16_bf16 %s, %s, %s, 0' % (v(P, 4), v(24 + 2 * hl, 2), v(XB, 2)))
                softmax_pm(A, P, T, OUT, 's44', 's45')
                if typ == 0:
                    A('buffer_store_dwordx4 %s, v22, s[28:31], s47 offen offset:%d' % (v(OUT, 4), hl * 1024)) if f == 0 else None
                    if f == 1:
                        A('v_add_u32 v36, 32768, v22')
                        A('buffer_store_dwordx4 %s, v36, s[28:31], s47 offen offset:%d' % (v(OUT, 4), hl * 1024))
                    A('s_nop 1')
                else:
                    A('v_mfma_f32_16x16x16_bf16 %s, %s, v[28:29], 0' % (v(TP, 4), v(OUT, 2)))
                    A('v_mfma_f32_16x16x16_bf16 %s, %s, v[28:29], 0' % (v(TN, 4), v(OUT + 2, 2)))
                    A('v_cvt_pk_bf16_f32 %s, %s, %s' % (v(KAP + 2 * f), v(TP), v(TP + 1)))
                    A('v_cvt_pk_bf16_f32 %s, %s, %s' % (v(KAP + 2 * f + 1), v(TP + 2), v(TP + 3)))
                    A('v_cvt_pk_bf16_f32 %s, %s, %s' % (v(KAN + 2 * f), v(TN), v(TN + 1)))
                    A('v_cvt_pk_bf16_f32 %s, %s, %s' % (v(KAN + 2 * f + 1), v(TN + 2), v(TN + 3)))
            acc = (f * 6 + 4 + hl) * 4
            for r in range(4):
                A('v_accvgpr_read_b32 %s, %s' % (v(X + r), a(acc + r)))
            A('v_cvt_pk_bf16_f32 %s, %s, %s' % (v(VB + 2 * f), v(X), v(X + 1)))
            A('v_cvt_pk_bf16_f32 %s, %s, %s' % (v(VB + 2 * f + 1), v(X + 2), v(X + 3)))
        A('v_mfma_f32_16x16x32_bf16 %s, %s, %s, 0' % (v(KV, 4), v(KAP, 4), v(VB, 4)))
        A('v_mfma_f32_16x16x32_bf16 %s, %s, %s, 0' % (v(KV + 4, 4), v(KAN, 4), v(VB, 4)))
        A('v_mfma_f32_16x16x32_bf16 %s, %s, v[32:35], 0' % (v(KV + 8, 4), v(KAP, 4)))
        A('v_mfma_f32_16x16x32_bf16 %s, %s, v[32:35], 0' % (v(KV + 12, 4), v(KAN, 4)))
        A('ds_write_b128 v23, %s offset:%d' % (v(KV, 4), hl * 2048))
        A('ds_write_b128 v23, %s offset:%d' % (v(KV + 4, 4), hl * 2048 + 16))
        A('ds_write_b128 v23, %s offset:%d' % (v(KV + 8, 4), 16384 + hl * 2048))
        A('ds_write_b128 v23, %s offset:%d' % (v(KV + 12, 4), 16384 + hl * 2048 + 16))
    pf.stamp('epi')
    A('''
    s_waitcnt lgkmcnt(0)
    s_barrier
    v_lshlrev_b32 v12, 2, v0
    v_add_u32 v15, %d, v12
    ''' % RED_OFF)
    for i in range(4):
        for w in range(4):
            A('ds_read_b32 %s, v15 offset:%d' % (v(64 + i * 4 + w), w * 4096 + i * 1024))
    A('''
    s_lshl_b32 s39, s38, 12
    s_waitcnt lgkmcnt(0)
    ''')
    for i in range(4):
        b = 64 + i * 4
        A('v_add_f32 %s, %s, %s' % (v(b), v(b), v(b + 1)))
        A('v_add_f32 %s, %s, %s' % (v(b + 2), v(b + 2), v(b + 3)))
        A('v_add_f32 %s, %s, %s' % (v(b), v(b), v(b + 2)))
        A('buffer_atomic_add_f32 %s, v12, s[32:35], s39 offen offset:%d' % (v(b), i * 1024))
    A('''
    s_cmp_lg_u32 s36, 0
    s_cbranch_scc1 K1_FIN
    v_lshrrev_b32 v13, 5, v1
    v_lshlrev_b32 v13, 11, v13
    v_bfe_u32 v14, v1, 3, 2
    v_lshl_add_u32 v13, v14, 9, v13
    v_and_b32 v14, 7, v1
    v_lshl_add_u32 v13, v14, 2, v13
    v_add_u32 v13, %d, v13
    ''' % ZRED_OFF)
    for w in range(4):
        A('ds_read_b32 %s, v13 offset:%d' % (v(80 + w), w * 4096))
    A('''
    s_lshl_b32 s39, s38, 8
    s_add_u32 s39, s39, 65536
    s_waitcnt lgkmcnt(0)
    v_add_f32 v80, v80, v81
    v_add_f32 v82, v82, v83
    v_add_f32 v80, v80, v82
    buffer_atomic_add_f32 v80, v12, s[32:35], s39 offen
    ''')
    A.label('K1_FIN')
    pf.finish()
    A.label('K1_END')
    A('s_endpgm')
    return dict(name=name, grid=256, block=256, lds=K1_LDS, vgpr=256 + 48, sgpr=102 if PROF else 48, accum=256)
```

```python
from common import *

RED = 65536
RSTRIDE = 272
RWAVE = 64 * RSTRIDE
K2_LDS = RED + 4 * RWAVE


def reduce_epilogue(A, vm, red_off, xsrd, osrd, gsrd_off_tag, stats):
    pass


def gen_k2(A):
    name = 'k2_wo_kernel'
    kernel_begin(A, name)
    vm = VM(A)
    pf = Prof(A, 2)
    A('''
    s_cmp_ge_u32 s2, 256
    s_cbranch_scc1 K2_END
    ''')
    pf.start()
    A('''
    s_load_dwordx2 s[4:5], s[0:1], 0
    s_load_dwordx2 s[6:7], s[0:1], 24
    s_load_dwordx2 s[8:9], s[0:1], 96
    v_lshrrev_b32 v2, 6, v0
    v_and_b32 v1, 63, v0
    v_readfirstlane_b32 s40, v2
    s_and_b32 s41, s2, 7
    s_lshl_b32 s41, s41, 2
    s_bfe_u32 s42, s2, 0x20003
    s_add_u32 s41, s41, s42
    s_lshr_b32 s42, s2, 5
    s_waitcnt lgkmcnt(0)
    ''')
    srd(A, 12, 4, 2048 * 1024)
    srd(A, 16, 6, 512 * 1024)
    srd(A, 20, 8, 2048 * 2048, WS_PHIQ)
    srd(A, 24, 8, 69632, WS_KVACC)
    srd(A, 28, 8, 12288, WS_MODF)
    srd(A, 32, 8, 2048 * 1024, WS_X1)
    srd(A, 36, 8, 2048 * 64, WS_STATS)
    A('''
    v_and_b32 v3, 15, v1
    v_lshrrev_b32 v4, 4, v1
    v_lshlrev_b32 v5, 5, v1
    v_lshlrev_b32 v6, 5, v4
    s_lshl_b32 s43, s40, 14
    s_lshl_b32 s44, s40, 10
    s_add_u32 s44, s44, 65536
    ''')
    RAW = 64
    for hh in range(8):
        A('buffer_load_dwordx4 %s, v5, s[24:27], s43 offen' % v(RAW + hh * 16, 4))
        A('buffer_load_dwordx4 %s, v5, s[24:27], s43 offen offset:16' % v(RAW + hh * 16 + 4, 4))
        A('buffer_load_dwordx4 %s, v6, s[24:27], s44 offen offset:%d' % (v(RAW + hh * 16 + 8, 4), hh * 128))
        A('buffer_load_dwordx4 %s, v6, s[24:27], s44 offen offset:%d' % (v(RAW + hh * 16 + 12, 4), hh * 128 + 16))
        vm.issue('kvz', 4)
        if hh < 7:
            A('s_add_u32 s43, s43, 2048')
    A('''
    v_lshlrev_b32 v7, 4, v1
    s_lshl_b32 s43, s41, 17
    s_lshl_b32 s44, s40, 13
    s_add_u32 s43, s43, s44
    ''')
    PQ = 64
    for hh in range(8):
        for rf in range(4):
            A('s_add_u32 s44, s43, %d' % (rf * 32768 + hh * 1024))
            A('buffer_load_dwordx4 %s, v7, s[20:23], s44 offen' % a(PQ + (rf * 8 + hh) * 4, 4))
            vm.issue('pq')
    A('''
    v_lshrrev_b32 v11, 3, v1
    v_and_b32 v12, 7, v1
    v_lshrrev_b32 v13, 1, v12
    v_bfe_u32 v14, v11, 1, 2
    v_xor_b32 v13, v13, v14
    v_and_b32 v12, 1, v12
    v_lshlrev_b32 v11, 10, v11
    v_lshl_add_u32 v11, v13, 5, v11
    v_lshl_add_u32 v11, v12, 4, v11
    s_lshl_b32 s43, s40, 17
    s_lshl_b32 s44, s42, 7
    s_add_u32 s43, s43, s44
    s_lshl_b32 s44, s40, 14
    ''')
    for i in range(16):
        A('s_mov_b32 m0, s44')
        A('buffer_load_dwordx4 v11, s[16:19], s43 offen lds')
        vm.issue('wo')
        if i < 15:
            A('s_add_u32 s43, s43, 8192')
            A('s_add_u32 s44, s44, 1024')
    pf.stamp('issued')
    A('''
    v_lshrrev_b32 v16, 2, v0
    v_and_b32 v17, 3, v0
    v_lshlrev_b32 v18, 10, v16
    v_lshl_add_u32 v18, v17, 5, v18
    s_lshl_b32 s45, s41, 16
    s_lshl_b32 s44, s42, 7
    s_add_u32 s45, s45, s44
    v_lshlrev_b32 v19, 6, v17
    s_lshl_b32 s46, s42, 8
    s_add_u32 s46, s46, 4096
    ''')
    A('''
    v_lshrrev_b32 v12, 2, v3
    v_lshl_add_u32 v12, v4, 2, v12
    v_lshlrev_b32 v12, 7, v12
    v_and_b32 v13, 3, v3
    v_lshl_add_u32 v12, v13, 3, v12
    s_lshl_b32 s44, s40, 14
    v_add_u32 v12, s44, v12
    v_lshrrev_b32 v13, 3, v3
    v_lshl_add_u32 v13, v4, 1, v13
    v_and_b32 v13, 3, v13
    ''')
    for cf in range(4):
        A('v_xor_b32 v14, %d, v13' % cf)
        A('v_lshl_add_u32 %s, v14, 5, v12' % v(20 + cf))
    for i in range(64):
        A('v_accvgpr_write_b32 %s, 0' % a(i))
    KVB, ZB = 192, 224
    pf.stamp('init')
    vm.wait('kvz')
    pf.stamp('kvz')
    for hh in range(8):
        for q in range(4):
            A('v_cvt_pk_bf16_f32 %s, %s, %s' % (v(KVB + hh * 4 + q), v(RAW + hh * 16 + 2 * q), v(RAW + hh * 16 + 2 * q + 1)))
        for q in range(4):
            A('v_cvt_pk_bf16_f32 %s, %s, %s' % (v(ZB + hh * 4 + q), v(RAW + hh * 16 + 8 + 2 * q), v(RAW + hh * 16 + 8 + 2 * q + 1)))
    vm.wait('wo')
    pf.stamp('wo')
    A('s_mov_b32 s47, 0x358637bd')
    WF = 32
    ND = 64
    O = 128
    T = 144

    def read_wo(t):
        for cf in range(4):
            for half in range(2):
                A('ds_read_b64_tr_b16 %s, %s offset:%d' % (v(WF + (t & 1) * 16 + cf * 4 + half * 2, 2), v(20 + cf), t * 4096 + half * 2048))
    read_wo(0)
    for t in range(4):
        for rf in range(4):
            for h2 in range(2):
                hh = 2 * t + h2
                nd = ND + (rf * 2 + h2) * 8
                A('v_mfma_f32_16x16x32_bf16 %s, %s, %s, 0' % (v(nd, 4), v(KVB + hh * 4, 4), a(PQ + (rf * 8 + hh) * 4, 4)))
                A('v_mfma_f32_16x16x32_bf16 %s, %s, %s, 0' % (v(nd + 4, 4), v(ZB + hh * 4, 4), a(PQ + (rf * 8 + hh) * 4, 4)))
        for q in range(8):
            nd = ND + q * 8
            bf16r(A, T + q, nd + 4)
        for q in range(8):
            A('v_add_f32 %s, s47, %s' % (v(T + q), v(T + q)))
        for q in range(8):
            bf16r(A, T + q, T + q)
        for q in range(8):
            A('v_rcp_f32 %s, %s' % (v(T + q), v(T + q)))
        for q in range(8):
            nd = ND + q * 8
            for r in range(4):
                A('v_mul_f32 %s, %s, %s' % (v(nd + r), v(nd + r), v(T + q)))
            A('v_cvt_pk_bf16_f32 %s, %s, %s' % (v(O + q * 2), v(nd), v(nd + 1)))
            A('v_cvt_pk_bf16_f32 %s, %s, %s' % (v(O + q * 2 + 1), v(nd + 2), v(nd + 3)))
        A('s_waitcnt lgkmcnt(0)')
        if t < 3:
            read_wo(t + 1)
        for rf in range(4):
            for cf in range(4):
                acc = a((rf * 4 + cf) * 4, 4)
                A('v_mfma_f32_16x16x32_bf16 %s, %s, %s, %s' % (acc, v(WF + (t & 1) * 16 + cf * 4, 4), v(O + rf * 4, 4), acc))
    pf.stamp('mfma_done')
    XR, GA = 160, 168
    A('buffer_load_dwordx4 %s, v18, s[12:15], s45 offen' % v(XR, 4))
    A('buffer_load_dwordx4 %s, v18, s[12:15], s45 offen offset:16' % v(XR + 4, 4))
    for q in range(4):
        A('buffer_load_dwordx4 %s, v19, s[28:31], s46 offen offset:%d' % (v(GA + q * 4, 4), q * 16))
    A('''
    v_mul_u32_u24 v12, %d, v3
    v_lshl_add_u32 v12, v4, 4, v12
    s_mul_i32 s44, s40, %d
    s_add_u32 s44, s44, %d
    v_add_u32 v12, s44, v12
    ''' % (RSTRIDE, RWAVE, RED))
    for rf in range(4):
        for cf in range(4):
            A('ds_write_b128 v12, %s offset:%d' % (a((rf * 4 + cf) * 4, 4), rf * 16 * RSTRIDE + cf * 64))
    A('''
    s_waitcnt lgkmcnt(0)
    s_barrier
    v_mul_u32_u24 v12, %d, v16
    v_lshl_add_u32 v12, v17, 6, v12
    v_add_u32 v12, %d, v12
    ''' % (RSTRIDE, RED))
    pf.stamp('bar')
    Y = 64
    for w in range(4):
        for j in range(4):
            A('ds_read_b128 %s, v12 offset:%d' % (v(Y + w * 16 + j * 4, 4), w * RWAVE + j * 16))
    A('s_waitcnt lgkmcnt(0)')
    for i in range(16):
        A('v_add_f32 %s, %s, %s' % (v(Y + i), v(Y + i), v(Y + 16 + i)))
        A('v_add_f32 %s, %s, %s' % (v(Y + 32 + i), v(Y + 32 + i), v(Y + 48 + i)))
    for i in range(16):
        A('v_add_f32 %s, %s, %s' % (v(Y + i), v(Y + i), v(Y + 32 + i)))
    P = 128
    for d in range(8):
        A('v_cvt_pk_bf16_f32 %s, %s, %s' % (v(P + d), v(Y + 2 * d), v(Y + 2 * d + 1)))
    for d in range(8):
        unpack(A, Y + 2 * d, Y + 2 * d + 1, P + d)
    A('s_waitcnt vmcnt(0)')
    for i in range(16):
        A('v_mul_f32 %s, %s, %s' % (v(Y + i), v(Y + i), v(GA + i)))
    for d in range(8):
        A('v_cvt_pk_bf16_f32 %s, %s, %s' % (v(P + d), v(Y + 2 * d), v(Y + 2 * d + 1)))
    for d in range(8):
        unpack(A, Y + 2 * d, Y + 2 * d + 1, P + d)
    XF = 96
    for d in range(8):
        unpack(A, XF + 2 * d, XF + 2 * d + 1, XR + d)
    for i in range(16):
        A('v_add_f32 %s, %s, %s' % (v(Y + i), v(Y + i), v(XF + i)))
    for d in range(8):
        A('v_cvt_pk_bf16_f32 %s, %s, %s' % (v(P + d), v(Y + 2 * d), v(Y + 2 * d + 1)))
    A('''
    v_lshrrev_b32 v12, 4, v16
    v_lshlrev_b32 v12, 14, v12
    v_lshl_add_u32 v12, v17, 9, v12
    v_and_b32 v13, 15, v16
    v_lshl_add_u32 v12, v13, 4, v12
    s_lshl_b32 s44, s41, 16
    s_lshl_b32 s43, s42, 11
    s_add_u32 s44, s44, s43
    ''')
    A('buffer_store_dwordx4 %s, v12, s[32:35], s44 offen' % v(P, 4))
    A('buffer_store_dwordx4 %s, v12, s[32:35], s44 offen offset:256' % v(P + 4, 4))
    for d in range(8):
        unpack(A, Y + 2 * d, Y + 2 * d + 1, P + d)
    S, M2, TT = 140, 141, 142
    A('v_add_f32 %s, %s, %s' % (v(S), v(Y), v(Y + 1)))
    for i in range(2, 16):
        A('v_add_f32 %s, %s, %s' % (v(S), v(S), v(Y + i)))
    A('v_add_f32_dpp %s, %s, %s quad_perm:[1,0,3,2] row_mask:0xf bank_mask:0xf' % (v(TT), v(S), v(S)))
    A('v_add_f32_dpp %s, %s, %s quad_perm:[2,3,0,1] row_mask:0xf bank_mask:0xf' % (v(S), v(TT), v(TT)))
    A('v_mul_f32 %s, 0x3c800000, %s' % (v(TT + 1), v(S)))
    A('v_mov_b32 %s, 0' % v(M2))
    for i in range(16):
        A('v_sub_f32 %s, %s, %s' % (v(Y + i), v(Y + i), v(TT + 1)))
    for i in range(16):
        A('v_fmac_f32 %s, %s, %s' % (v(M2), v(Y + i), v(Y + i)))
    A('v_add_f32_dpp %s, %s, %s quad_perm:[1,0,3,2] row_mask:0xf bank_mask:0xf' % (v(TT), v(M2), v(M2)))
    A('v_add_f32_dpp %s, %s, %s quad_perm:[2,3,0,1] row_mask:0xf bank_mask:0xf' % (v(M2), v(TT), v(TT)))
    A('''
    v_lshlrev_b32 v12, 6, v16
    s_lshl_b32 s44, s41, 12
    s_lshl_b32 s43, s42, 3
    s_add_u32 s44, s44, s43
    buffer_store_dwordx2 v[140:141], v12, s[36:39], s44 offen
    ''')
    pf.finish()
    A.label('K2_END')
    A('s_endpgm')
    return dict(name=name, grid=256, block=256, lds=K2_LDS, vgpr=256 + 192, sgpr=102 if PROF else 48, accum=256)
```

```python
from common import *

SLOT = 24576
CONST3 = 6 * SLOT
K3_LDS = CONST3 + 4096


def gen_k3(A):
    name = 'k3_ffn1_kernel'
    kernel_begin(A, name)
    vm = VM(A)
    pf = Prof(A, 3)
    A('''
    s_cmp_ge_u32 s2, 240
    s_cbranch_scc1 K3_END
    ''')
    pf.start()
    A('''
    s_load_dwordx4 s[4:7], s[0:1], 40
    s_load_dwordx2 s[8:9], s[0:1], 96
    v_lshrrev_b32 v2, 6, v0
    v_and_b32 v1, 63, v0
    v_readfirstlane_b32 s40, v2
    s_and_b32 s41, s2, 3
    s_mul_i32 s41, s41, 30
    s_lshr_b32 s42, s2, 3
    s_add_u32 s43, s41, s42
    s_lshr_b32 s42, s43, 3
    s_and_b32 s41, s43, 7
    s_bfe_u32 s43, s2, 0x10002
    s_lshl_b32 s43, s43, 3
    s_add_u32 s41, s41, s43
    s_waitcnt lgkmcnt(0)
    ''')
    srd(A, 12, 8, 2048 * 1024, WS_X1)
    srd(A, 16, 4, 512 * 2752)
    srd(A, 20, 6, 512 * 2752)
    srd(A, 24, 8, 12288, WS_MODF)
    srd(A, 28, 8, 2048 * 64, WS_STATS)
    srd(A, 32, 8, 2048 * 2752, WS_HH)
    A('''
    v_and_b32 v3, 15, v1
    v_lshrrev_b32 v4, 4, v1
    v_lshlrev_b32 v5, 4, v1
    s_lshl_b32 s43, s40, 10
    s_add_u32 s44, s43, %d
    s_add_u32 s43, s43, 6144
    s_mov_b32 m0, s44
    buffer_load_dwordx4 v5, s[24:27], s43 offen lds
    ''' % CONST3)
    vm.issue('pA')
    ST = 192
    A('''
    v_lshlrev_b32 v6, 6, v3
    s_lshl_b32 s43, s41, 13
    s_lshl_b32 s44, s40, 11
    s_add_u32 s43, s43, s44
    ''')
    for f in range(2):
        for q in range(4):
            A('buffer_load_dwordx4 %s, v6, s[28:31], s43 offen offset:%d' % (v(ST + f * 16 + q * 4, 4), f * 1024 + q * 16))
            vm.issue('pA')
    for j in range(3):
        A('''
        v_add_u32 v12, %d, v1
        v_mul_u32_u24 v13, 43691, v12
        v_lshrrev_b32 v13, 19, v13
        v_mul_u32_u24 v14, 12, v13
        v_sub_u32 v14, v12, v14
        v_lshrrev_b32 v15, 1, v14
        v_and_b32 v14, 1, v14
        v_lshrrev_b32 v16, 3, v13
        v_xor_b32 v15, v15, v16
        v_mul_u32_u24 v13, 2752, v13
        v_lshl_add_u32 v13, v15, 5, v13
        v_lshl_add_u32 %s, v14, 4, v13
        ''' % (j * 64, v(8 + j)))
    A('''
    v_lshlrev_b32 v6, 4, v1
    s_lshl_b32 s46, s41, 17
    s_lshl_b32 s43, s40, 15
    s_add_u32 s46, s46, s43
    s_mul_i32 s47, s40, %d
    s_mul_i32 s43, s42, 192
    s_add_u32 s47, s47, s43
    s_mul_i32 s48, s40, 3072
    ''' % (16 * 2752))
    AR = 64

    def load_chunk(c, tag):
        slot = c % 6
        A('s_add_u32 s43, s47, %d' % (c * 64 * 2752))
        for mat in range(2):
            for j in range(3):
                A('s_add_u32 s44, s48, %d' % (slot * SLOT + mat * 12288 + j * 1024))
                A('s_mov_b32 m0, s44')
                A('buffer_load_dwordx4 %s, %s, s43 offen lds' % (v(8 + j), 's[16:19]' if mat == 0 else 's[20:23]'))
                vm.issue(tag)

    def load_A(ks, tag):
        for f in range(2):
            A('s_add_u32 s44, s46, %d' % (f * 16384 + ks * 1024))
            A('buffer_load_dwordx4 %s, v6, s[12:15], s44 offen' % v(AR + (ks * 2 + f) * 4, 4))
            vm.issue(tag)
    for c in range(6):
        tag = 'pA' if c < 3 else 'pB'
        load_chunk(c, tag)
        load_A(2 * c, tag)
        load_A(2 * c + 1, tag)
    pf.stamp('issued')
    A('''
    v_lshrrev_b32 v12, 2, v3
    v_lshl_add_u32 v12, v4, 3, v12
    v_mul_u32_u24 v12, 192, v12
    v_and_b32 v13, 3, v3
    v_lshl_add_u32 v12, v13, 3, v12
    v_and_b32 v13, 1, v4
    v_lshlrev_b32 v13, 5, v13
    v_add_u32 v16, v12, v13
    v_sub_u32 v17, v12, v13
    v_add_u32 v17, 32, v17
    v_add_u32 v18, %d, v16
    v_add_u32 v19, %d, v17
    v_add_u32 v20, %d, v16
    v_add_u32 v21, %d, v17
    v_lshlrev_b32 v22, 5, v4
    v_add_u32 v22, %d, v22
    ''' % (2 * SLOT, 2 * SLOT, 4 * SLOT, 4 * SLOT, CONST3))
    for i in range(96):
        A('v_accvgpr_write_b32 %s, 0' % a(i))
    pf.stamp('init')
    vm.wait('pA')
    A('s_barrier')
    pf.stamp('pA')
    for f in range(2):
        b = ST + f * 16
        sm, t0, t1 = 28, 29, 30
        A('v_add_f32 %s, %s, %s' % (v(sm), v(b), v(b + 2)))
        for i in range(2, 8):
            A('v_add_f32 %s, %s, %s' % (v(sm), v(sm), v(b + 2 * i)))
        A('v_mul_f32 %s, 0x3b000000, %s' % (v(sm), v(sm)))
        A('v_add_f32 %s, %s, %s' % (v(t1), v(b + 1), v(b + 3)))
        for i in range(2, 8):
            A('v_add_f32 %s, %s, %s' % (v(t1), v(t1), v(b + 2 * i + 1)))
        A('v_mov_b32 v31, 0')
        for i in range(8):
            A('v_mul_f32 %s, 0x3c800000, %s' % (v(t0), v(b + 2 * i)))
            A('v_sub_f32 %s, %s, %s' % (v(t0), v(t0), v(sm)))
            A('v_fmac_f32 v31, %s, %s' % (v(t0), v(t0)))
        A('v_mov_b32 %s, 0x42800000' % v(t0))
        A('v_fmac_f32 %s, v31, %s' % (v(t1), v(t0)))
        A('v_mul_f32 %s, 0x3b000000, %s' % (v(t1), v(t1)))
        bf16r(A, sm, sm)
        bf16r(A, t1, t1)
        A('v_add_f32 %s, 0x3727c5ac, %s' % (v(t1), v(t1)))
        bf16r(A, t1, t1)
        A('v_sqrt_f32 %s, %s' % (v(t1), v(t1)))
        bf16r(A, t1, t1)
        A('v_rcp_f32 %s, %s' % (v(24 + f), v(t1)))
        A('v_mul_f32 %s, %s, %s' % (v(26 + f), v(sm), v(24 + f)))
        A('v_sub_f32 %s, 0, %s' % (v(26 + f), v(26 + f)))
    CB = 32
    BB = 192
    TMP = 240

    def read_consts(ks):
        c = CB + (ks & 1) * 16
        A('ds_read_b128 %s, v22 offset:%d' % (v(c, 4), ks * 128))
        A('ds_read_b128 %s, v22 offset:%d' % (v(c + 4, 4), ks * 128 + 16))
        A('ds_read_b128 %s, v22 offset:%d' % (v(c + 8, 4), ks * 128 + 2048))
        A('ds_read_b128 %s, v22 offset:%d' % (v(c + 12, 4), ks * 128 + 2064))

    def read_B(ks, mat):
        bb = BB + mat * 24
        slot = (ks // 2) % 6
        wd = slot // 2
        for b in range(6):
            base = 16 + 2 * wd + (b % 2)
            for half in range(2):
                off = (slot % 2) * SLOT + mat * 12288 + (ks % 2) * 6144 + half * 768 + (b & ~1) * 32
                A('ds_read_b64_tr_b16 %s, %s offset:%d' % (v(bb + b * 4 + half * 2, 2), v(base), off))

    def procA_instrs(ks):
        c = CB + (ks & 1) * 16
        L = []
        for f in range(2):
            R = AR + (ks * 2 + f) * 4
            for d in range(4):
                t = TMP + ((f * 4 + d) % 4) * 2
                L.append('v_lshlrev_b32 %s, 16, %s' % (v(t), v(R + d)))
                L.append('v_and_b32 %s, 0xffff0000, %s' % (v(t + 1), v(R + d)))
                L.append('v_fma_f32 %s, %s, %s, %s' % (v(t), v(t), v(24 + f), v(26 + f)))
                L.append('v_fma_f32 %s, %s, %s, %s' % (v(t + 1), v(t + 1), v(24 + f), v(26 + f)))
                L.append('v_fma_f32 %s, %s, %s, %s' % (v(t), v(t), v(c + 8 + 2 * d), v(c + 2 * d)))
                L.append('v_fma_f32 %s, %s, %s, %s' % (v(t + 1), v(t + 1), v(c + 9 + 2 * d), v(c + 1 + 2 * d)))
                L.append('v_cvt_pk_bf16_f32 %s, %s, %s' % (v(R + d), v(t), v(t + 1)))
        return L

    def mfma_instrs(ks, mat):
        bb = BB + mat * 24
        L = []
        for b in range(6):
            for f in range(2):
                R = AR + (ks * 2 + f) * 4
                acc = a((f * 12 + mat * 6 + b) * 4, 4)
                L.append('v_mfma_f32_16x16x32_bf16 %s, %s, %s, %s' % (acc, v(bb + b * 4, 4), v(R, 4), acc))
        return L

    def interleave(M, V):
        vi = 0
        for mi, m in enumerate(M):
            A(m)
            n = (len(V) * (mi + 1)) // len(M) - vi
            for _ in range(n):
                A(V[vi])
                vi += 1
    read_consts(0)
    read_consts(1)
    read_B(0, 0)
    A('s_waitcnt lgkmcnt(12)')
    for ins in procA_instrs(0):
        A(ins)
    for ks in range(16):
        if ks == 5:
            pf.stamp('b4pB')
            vm.wait('pB')
            A('s_barrier')
            pf.stamp('pB')
            load_chunk(6, 'pC')
            load_chunk(7, 'pC')
            for k2 in range(12, 16):
                load_A(k2, 'pC')
        if ks == 11:
            pf.stamp('b4pC')
            vm.wait('pC')
            A('s_barrier')
            pf.stamp('pC')
        V = procA_instrs(ks + 1) if ks + 1 < 16 else []
        h = len(V) // 2
        A('s_waitcnt lgkmcnt(0)')
        read_B(ks, 1)
        interleave(mfma_instrs(ks, 0), V[:h])
        A('s_waitcnt lgkmcnt(0)')
        if ks + 1 < 16:
            read_B(ks + 1, 0)
        interleave(mfma_instrs(ks, 1), V[h:])
        if ks + 2 < 16:
            read_consts(ks + 2)
    pf.stamp('mfma_done')
    A('''
    s_mov_b32 s50, 0xc0135761
    s_mov_b32 s51, 0xbdd2d3e8
    v_lshlrev_b32 v12, 4, v1
    v_add_u32 v13, %d, v12
    s_mul_i32 s43, s41, %d
    s_mul_i32 s44, s40, %d
    s_add_u32 s43, s43, s44
    s_mul_i32 s44, s42, 3072
    s_add_u32 s43, s43, s44
    ''' % (43 * 1024, 8 * 43 * 1024, 2 * 43 * 1024))
    G, U, T, PK = 64, 68, 72, 96
    for jp in range(3):
        if jp == 1:
            A('s_cmp_eq_u32 s42, 14')
            A('s_cbranch_scc1 K3_FIN')
        for f in range(2):
            for jj in range(2):
                j = jp * 2 + jj
                ag, au = (f * 12 + j) * 4, (f * 12 + 6 + j) * 4
                for r in range(4):
                    A('v_accvgpr_read_b32 %s, %s' % (v(G + r), a(ag + r)))
                for r in range(4):
                    A('v_accvgpr_read_b32 %s, %s' % (v(U + r), a(au + r)))
                A('v_cvt_pk_bf16_f32 %s, %s, %s' % (v(T), v(G), v(G + 1)))
                A('v_cvt_pk_bf16_f32 %s, %s, %s' % (v(T + 1), v(G + 2), v(G + 3)))
                A('v_cvt_pk_bf16_f32 %s, %s, %s' % (v(T + 2), v(U), v(U + 1)))
                A('v_cvt_pk_bf16_f32 %s, %s, %s' % (v(T + 3), v(U + 2), v(U + 3)))
                unpack(A, G, G + 1, T)
                unpack(A, G + 2, G + 3, T + 1)
                unpack(A, U, U + 1, T + 2)
                unpack(A, U + 2, U + 3, T + 3)
                E = T + 4
                for r in range(4):
                    A('v_mul_f32 %s, %s, %s' % (v(E + r), v(G + r), v(G + r)))
                for r in range(4):
                    A('v_mov_b32 %s, s50' % v(E + 4 + r))
                for r in range(4):
                    A('v_fmac_f32 %s, s51, %s' % (v(E + 4 + r), v(E + r)))
                for r in range(4):
                    A('v_mul_f32 %s, %s, %s' % (v(E + r), v(E + 4 + r), v(G + r)))
                for r in range(4):
                    A('v_exp_f32 %s, %s' % (v(E + r), v(E + r)))
                for r in range(4):
                    A('v_add_f32 %s, 1.0, %s' % (v(E + r), v(E + r)))
                for r in range(4):
                    A('v_rcp_f32 %s, %s' % (v(E + r), v(E + r)))
                for r in range(4):
                    A('v_mul_f32 %s, %s, %s' % (v(G + r), v(G + r), v(E + r)))
                A('v_cvt_pk_bf16_f32 %s, %s, %s' % (v(T), v(G), v(G + 1)))
                A('v_cvt_pk_bf16_f32 %s, %s, %s' % (v(T + 1), v(G + 2), v(G + 3)))
                unpack(A, G, G + 1, T)
                unpack(A, G + 2, G + 3, T + 1)
                for r in range(4):
                    A('v_mul_f32 %s, %s, %s' % (v(G + r), v(G + r), v(U + r)))
                A('v_cvt_pk_bf16_f32 %s, %s, %s' % (v(PK + f * 4 + jj * 2), v(G), v(G + 1)))
                A('v_cvt_pk_bf16_f32 %s, %s, %s' % (v(PK + f * 4 + jj * 2 + 1), v(G + 2), v(G + 3)))
            p = PK + f * 4
            A('buffer_store_dwordx4 %s, %s, s[32:35], s43 offen offset:%d' % (v(p, 4), v(12 + f), jp * 1024))
            A('s_nop 1')
    A.label('K3_FIN')
    pf.finish()
    A.label('K3_END')
    A('s_endpgm')
    return dict(name=name, grid=240, block=256, lds=K3_LDS, vgpr=256 + 96, sgpr=102 if PROF else 56, accum=256)
```

```python
from common import *

SLOT = 8192
NS = 4
DEP = NS - 1
K4_LDS = 4 * NS * SLOT


def exchange_reduce(A, Y, T, s_w, s_base, wstride, v_lane16):
    A('v_add_u32 %s, %s, %s' % (v(T + 48), s_base, v_lane16))
    for r in range(1, 4):
        for cf in range(4):
            A('ds_write_b128 %s, %s offset:%d' % (v(T + 48), a(r * 16 + cf * 4, 4), (r - 1) * 4096 + cf * 1024))
    for i in range(16):
        A('v_accvgpr_read_b32 %s, %s' % (v(Y + i), a(i)))
    for r in range(1, 4):
        A('s_sub_u32 s44, %s, %d' % (s_w, r))
        A('s_and_b32 s44, s44, 3')
        A('s_mul_i32 s44, s44, %d' % wstride)
        A('v_add_u32 %s, s44, %s' % (v(Y + 15 + r), v_lane16))
    A('s_waitcnt lgkmcnt(0)')
    A('s_barrier')
    for r in range(1, 4):
        for cf in range(4):
            A('ds_read_b128 %s, %s offset:%d' % (v(T + (r - 1) * 16 + cf * 4, 4), v(Y + 15 + r), (r - 1) * 4096 + cf * 1024))
    A('s_waitcnt lgkmcnt(4)')
    for i in range(0, 16, 2):
        A('v_pk_add_f32 %s, %s, %s' % (v(T + i, 2), v(T + i, 2), v(T + 16 + i, 2)))
    A('s_waitcnt lgkmcnt(0)')
    for i in range(0, 16, 2):
        A('v_pk_add_f32 %s, %s, %s' % (v(Y + i, 2), v(Y + i, 2), v(T + 32 + i, 2)))
    for i in range(0, 16, 2):
        A('v_pk_add_f32 %s, %s, %s' % (v(Y + i, 2), v(Y + i, 2), v(T + i, 2)))


def gen_k4(A):
    name = 'k4_ffn2_kernel'
    kernel_begin(A, name)
    pf = Prof(A, 4)
    A('''
    s_cmp_ge_u32 s2, 256
    s_cbranch_scc1 K4_END
    ''')
    pf.start()
    A('''
    s_load_dwordx2 s[4:5], s[0:1], 56
    s_load_dwordx2 s[8:9], s[0:1], 96
    s_load_dwordx2 s[6:7], s[0:1], 80
    v_lshrrev_b32 v2, 6, v0
    v_and_b32 v1, 63, v0
    v_readfirstlane_b32 s40, v2
    s_and_b32 s41, s2, 7
    s_lshl_b32 s41, s41, 2
    s_bfe_u32 s42, s2, 0x20003
    s_add_u32 s41, s41, s42
    s_lshr_b32 s42, s2, 5
    v_lshlrev_b32 v9, 4, v1
    s_mul_i32 s44, s40, 44032
    v_add_u32 v5, s44, v9
    s_add_u32 s44, s40, 1
    s_and_b32 s44, s44, 3
    s_mul_i32 s44, s44, 44032
    v_add_u32 v6, s44, v9
    s_add_u32 s44, s40, 2
    s_and_b32 s44, s44, 3
    s_mul_i32 s44, s44, 44032
    v_add_u32 v7, s44, v9
    s_add_u32 s44, s40, 3
    s_and_b32 s44, s44, 3
    s_mul_i32 s44, s44, 44032
    v_add_u32 v8, s44, v9
    s_mul_i32 s43, s41, %d
    s_mul_i32 s44, s40, 11264
    s_add_u32 s43, s43, s44
    v_lshrrev_b32 v12, 3, v1
    v_and_b32 v13, 7, v1
    v_lshrrev_b32 v14, 1, v13
    v_and_b32 v13, 1, v13
    v_bfe_u32 v15, v12, 1, 2
    v_xor_b32 v14, v14, v15
    v_lshlrev_b32 v12, 10, v12
    v_lshl_add_u32 v12, v13, 4, v12
    v_lshl_add_u32 v10, v14, 5, v12
    v_add_u32 v11, 8192, v10
    v_add_u32 v12, 16384, v10
    v_add_u32 v13, 24576, v10
    s_mul_i32 s45, s40, %d
    s_lshl_b32 s44, s42, 7
    s_add_u32 s45, s45, s44
    s_mul_i32 s46, s40, %d
    s_mov_b32 s47, 0
    s_mov_b32 s48, 0
    s_mov_b32 s49, %d
    s_cmp_eq_u32 s40, 3
    s_cselect_b32 s50, 10, 11
    v_and_b32 v3, 15, v1
    v_lshrrev_b32 v4, 4, v1
    s_waitcnt lgkmcnt(0)
    ''' % (4 * 43 * 1024, 11 * 32768, NS * SLOT, -DEP))
    srd(A, 12, 8, 2048 * 2752, WS_HH)
    srd(A, 16, 4, 1376 * 1024)
    srd(A, 20, 8, 2048 * 1024, WS_X1)
    srd(A, 24, 8, 12288, WS_MODF)
    srd(A, 28, 6, 2048 * 1024)
    XR, GA = 96, 104
    A('''
    v_lshrrev_b32 v14, 1, v4
    v_lshl_add_u32 v14, v14, 4, v3
    v_lshlrev_b32 v14, 4, v14
    v_and_b32 v15, 1, v4
    v_lshl_add_u32 v16, v15, 3, v14
    s_lshl_b32 s52, s41, 2
    s_add_u32 s52, s52, s40
    s_lshl_b32 s52, s52, 14
    s_lshl_b32 s44, s42, 11
    s_add_u32 s53, s52, s44
    v_lshlrev_b32 v17, 4, v4
    s_lshl_b32 s51, s42, 8
    s_add_u32 s51, s51, 10240
    ''')
    for cf in range(4):
        A('buffer_load_dwordx2 %s, v16, s[20:23], s53 offen offset:%d' % (v(XR + cf * 2, 2), (cf >> 1) * 1024 + (cf & 1) * 512))
        A('buffer_load_dwordx4 %s, v17, s[24:27], s51 offen offset:%d' % (v(GA + cf * 4, 4), cf * 64))
    WF, AF = 32, 48

    def issue():
        A('s_add_u32 s51, s46, s47')
        for i in range(4):
            A('s_add_u32 m0, s51, %d' % (i * 1024))
            if os.environ.get('K4X') == 'A':
                A('buffer_load_dwordx4 %s, s[12:15], s43 offen lds' % v(5 + i))
            else:
                A('buffer_load_dwordx4 %s, s[16:19], s45 offen lds' % v(10 + i))
            A('s_add_u32 m0, s51, %d' % (4096 + i * 1024))
            if os.environ.get('K4X') == 'W':
                A('buffer_load_dwordx4 %s, s[16:19], s45 offen lds' % v(10 + i))
            else:
                A('buffer_load_dwordx4 %s, s[12:15], s43 offen lds' % v(5 + i))
        A('''
        s_add_u32 s45, s45, 32768
        s_add_u32 s43, s43, 1024
        s_add_u32 s47, s47, %d
        s_cmp_eq_u32 s47, %d
        s_cselect_b32 s47, 0, s47
        ''' % (SLOT, NS * SLOT))
    A.label('K4_PRE')
    issue()
    A('''
    s_add_u32 s49, s49, 1
    s_cmp_lt_i32 s49, 0
    s_cbranch_scc1 K4_PRE
    ''')
    pf.stamp('issued')
    A('''
    v_lshrrev_b32 v14, 2, v3
    v_lshl_add_u32 v14, v4, 2, v14
    v_lshlrev_b32 v14, 7, v14
    v_and_b32 v15, 3, v3
    v_lshl_add_u32 v14, v15, 3, v14
    v_add_u32 v14, s46, v14
    v_lshrrev_b32 v15, 3, v3
    v_lshl_add_u32 v15, v4, 1, v15
    v_and_b32 v15, 3, v15
    ''')
    for cf in range(4):
        A('v_xor_b32 v18, %d, v15' % cf)
        A('v_lshl_add_u32 %s, v18, 5, v14' % v(20 + cf))
    A('''
    s_add_u32 s44, s46, 4096
    v_add_u32 v24, s44, v9
    v_lshlrev_b32 v18, 10, v3
    v_lshl_add_u32 v18, v4, 3, v18
    s_lshl_b32 s44, s42, 7
    s_add_u32 s52, s52, s44
    ''')
    for i in range(64):
        A('v_accvgpr_write_b32 %s, 0' % a(i))
    A.label('K4_LOOP')
    A('s_sub_u32 s44, s50, s49')
    for r in range(DEP - 1, 0, -1):
        A('s_cmp_gt_u32 s44, %d' % r)
        A('s_cbranch_scc1 K4_W%d' % r)
    A('s_waitcnt vmcnt(0)')
    for r in range(1, DEP):
        A.label('K4_W%d' % r)
        A('s_waitcnt vmcnt(%d)' % (8 * r))
    for i in range(5):
        A('v_add_u32 %s, s48, %s' % (v(26 + i), v(20 + i)))
    for cf in range(4):
        for half in range(2):
            A('ds_read_b64_tr_b16 %s, %s offset:%d' % (v(WF + cf * 4 + half * 2, 2), v(26 + cf), half * 2048))
    for rf in range(4):
        A('ds_read_b128 %s, v30 offset:%d' % (v(AF + rf * 4, 4), rf * 1024))
    A('''
    s_cmp_le_u32 s44, %d
    s_cbranch_scc1 K4_SKIP
    ''' % DEP)
    issue()
    A.label('K4_SKIP')
    A('s_waitcnt lgkmcnt(0)')
    for rf in range(4):
        for cf in range(4):
            acc = a((rf * 4 + cf) * 4, 4)
            A('v_mfma_f32_16x16x32_bf16 %s, %s, %s, %s' % (acc, v(WF + cf * 4, 4), v(AF + rf * 4, 4), acc))
    A('''
    s_add_u32 s48, s48, %d
    s_cmp_eq_u32 s48, %d
    s_cselect_b32 s48, 0, s48
    s_add_u32 s49, s49, 1
    s_cmp_lt_i32 s49, s50
    s_cbranch_scc1 K4_LOOP
    ''' % (SLOT, NS * SLOT))
    pf.stamp('mfma_done')
    A('s_nop 7')
    Y = 64
    exchange_reduce(A, Y, 128, 's40', 's46', NS * SLOT, 'v9')
    pf.stamp('red')
    P = 128
    for d in range(8):
        A('v_cvt_pk_bf16_f32 %s, %s, %s' % (v(P + d), v(Y + 2 * d), v(Y + 2 * d + 1)))
    for d in range(8):
        unpack(A, Y + 2 * d, Y + 2 * d + 1, P + d)
    for i in range(0, 16, 2):
        A('v_pk_mul_f32 %s, %s, %s' % (v(Y + i, 2), v(Y + i, 2), v(GA + i, 2)))
    for d in range(8):
        A('v_cvt_pk_bf16_f32 %s, %s, %s' % (v(P + d), v(Y + 2 * d), v(Y + 2 * d + 1)))
    for d in range(8):
        unpack(A, Y + 2 * d, Y + 2 * d + 1, P + d)
    XF = 144
    for d in range(8):
        unpack(A, XF + 2 * d, XF + 2 * d + 1, XR + d)
    for i in range(0, 16, 2):
        A('v_pk_add_f32 %s, %s, %s' % (v(Y + i, 2), v(Y + i, 2), v(XF + i, 2)))
    for d in range(8):
        A('v_cvt_pk_bf16_f32 %s, %s, %s' % (v(P + d), v(Y + 2 * d), v(Y + 2 * d + 1)))
    for cf in range(4):
        A('buffer_store_dwordx2 %s, v18, s[28:31], s52 offen offset:%d' % (v(P + cf * 2, 2), cf * 32))
    pf.finish()
    A.label('K4_END')
    A('s_endpgm')
    return dict(name=name, grid=256, block=256, lds=K4_LDS, vgpr=192 + 64, sgpr=102 if PROF else 56, accum=192)
```

```python
from common import *


def gen_k0(A):
    name = 'k0_prep_kernel'
    kernel_begin(A, name)
    A('''
    s_cmp_ge_u32 s2, 450
    s_cbranch_scc1 K0_END
    s_cmp_ge_u32 s2, 352
    s_cbranch_scc1 K0_PF
    s_load_dwordx2 s[4:5], s[0:1], 0
    s_load_dwordx4 s[8:11], s[0:1], 64
    s_load_dwordx2 s[6:7], s[0:1], 96
    s_waitcnt lgkmcnt(0)
    s_cmp_ge_u32 s2, 96
    s_cbranch_scc1 K0_XH
    ''')
    srd(A, 12, 8, 1024)
    srd(A, 16, 10, 512 * 6144)
    srd(A, 20, 6, 0x8000 + 6144, WS_MODF)
    A('''
    v_and_b32 v1, 3, v0
    v_lshrrev_b32 v2, 2, v0
    v_lshlrev_b32 v3, 4, v2
    buffer_load_dwordx4 v[4:7], v3, s[12:15], 0 offen
    s_mov_b32 s24, 49152
    v_mul_lo_u32 v3, v2, s24
    v_lshl_add_u32 v3, v1, 4, v3
    s_lshl_b32 s25, s2, 6
    v_add_u32 v3, s25, v3
    ''')
    for i in range(8):
        A('s_mov_b32 s26, %d' % (i * 6144))
        A('buffer_load_dwordx4 %s, v3, s[16:19], s26 offen' % v(16 + 4 * i, 4))
    A('s_waitcnt vmcnt(8)')
    for d in range(4):
        unpack(A, 48 + 2 * d, 49 + 2 * d, 4 + d)
    A('s_mov_b32 s27, 0x%x' % (LOG2E | 0x80000000))
    for i in range(8):
        A('v_mul_f32 %s, s27, %s' % (v(56 + i), v(48 + i)))
    for i in range(8):
        A('v_exp_f32 %s, %s' % (v(56 + i), v(56 + i)))
    for i in range(8):
        A('v_add_f32 %s, 1.0, %s' % (v(56 + i), v(56 + i)))
    for i in range(8):
        A('v_rcp_f32 %s, %s' % (v(56 + i), v(56 + i)))
    for i in range(8):
        A('v_mul_f32 %s, %s, %s' % (v(48 + i), v(48 + i), v(56 + i)))
    for d in range(4):
        A('v_cvt_pk_bf16_f32 %s, %s, %s' % (v(56 + d), v(48 + 2 * d), v(49 + 2 * d)))
    for d in range(4):
        unpack(A, 48 + 2 * d, 49 + 2 * d, 56 + d)
    for j in range(8):
        A('v_mov_b32 %s, 0' % v(64 + j))
    for i in range(8):
        A('s_waitcnt vmcnt(%d)' % (7 - i))
        for d in range(4):
            unpack(A, 72 + 2 * d, 73 + 2 * d, 16 + 4 * i + d)
        for j in range(8):
            A('v_fmac_f32 %s, %s, %s' % (v(64 + j), v(48 + i), v(72 + j)))
    A('''
    v_lshlrev_b32 v3, 5, v0
    ds_write_b128 v3, v[64:67]
    ds_write_b128 v3, v[68:71] offset:16
    s_waitcnt lgkmcnt(0)
    s_barrier
    v_and_b32 v1, 31, v0
    v_lshrrev_b32 v2, 5, v0
    v_lshlrev_b32 v3, 10, v2
    v_lshl_add_u32 v3, v1, 2, v3
    ''')
    for i in range(8):
        A('ds_read_b32 %s, v3 offset:%d' % (v(64 + i), i * 128))
    A('s_waitcnt lgkmcnt(0)')
    A('''
    v_add_f32 v64, v64, v65
    v_add_f32 v66, v66, v67
    v_add_f32 v68, v68, v69
    v_add_f32 v70, v70, v71
    v_add_f32 v64, v64, v66
    v_add_f32 v68, v68, v70
    v_add_f32 v64, v64, v68
    v_lshlrev_b32 v3, 2, v0
    ds_write_b32 v3, v64 offset:8192
    s_waitcnt lgkmcnt(0)
    s_barrier
    v_readfirstlane_b32 s28, v0
    s_cmp_ge_u32 s28, 64
    s_cbranch_scc1 K0_END
    v_lshlrev_b32 v3, 2, v1
    ''')
    for i in range(8):
        A('ds_read_b32 %s, v3 offset:%d' % (v(64 + i), 8192 + i * 128))
    A('s_waitcnt lgkmcnt(0)')
    A('''
    v_add_f32 v64, v64, v65
    v_add_f32 v66, v66, v67
    v_add_f32 v68, v68, v69
    v_add_f32 v70, v70, v71
    v_add_f32 v64, v64, v66
    v_add_f32 v68, v68, v70
    v_add_f32 v64, v64, v68
    ''')
    bf16r(A, 64, 64)
    A('''
    s_lshr_b32 s28, s2, 4
    s_cmp_eq_u32 s28, 1
    s_cbranch_scc1 K0_PLUS1
    s_cmp_eq_u32 s28, 4
    s_cbranch_scc0 K0_STORE
    ''')
    A.label('K0_PLUS1')
    A('v_add_f32 v64, 1.0, v64')
    bf16r(A, 64, 64)
    A.label('K0_STORE')
    A('''
    s_lshl_b32 s28, s2, 7
    v_add_u32 v3, s28, v3
    buffer_store_dword v64, v3, s[20:23], 0 offen
    v_lshrrev_b32 v3, 1, v3
    v_add_u32 v3, 0x8000, v3
    buffer_store_short_d16_hi v64, v3, s[20:23], 0 offen
    s_endpgm
    ''')
    A.label('K0_XH')
    A.fence()
    srd(A, 12, 4, 2048 * 1024)
    srd(A, 16, 6, 2048 * 1024, WS_XH)
    srd(A, 20, 6, 69632, WS_KVACC)
    A('''
    s_sub_u32 s24, s2, 96
    s_lshl_b32 s25, s24, 13
    v_lshrrev_b32 v1, 6, v0
    v_and_b32 v2, 63, v0
    v_lshlrev_b32 v1, 11, v1
    v_lshl_add_u32 v1, v2, 4, v1
    buffer_load_dwordx4 v[4:7], v1, s[12:15], s25 offen
    buffer_load_dwordx4 v[8:11], v1, s[12:15], s25 offen offset:1024
    s_cmp_ge_u32 s24, 17
    s_cbranch_scc1 K0_NOZERO
    v_mov_b32 v12, 0
    v_mov_b32 v13, 0
    v_mov_b32 v14, 0
    v_mov_b32 v15, 0
    v_lshlrev_b32 v2, 4, v0
    s_lshl_b32 s26, s24, 12
    buffer_store_dwordx4 v[12:15], v2, s[20:23], s26 offen
    ''')
    A.label('K0_NOZERO')
    A('s_waitcnt vmcnt(0)')
    R = [(4, 16, 32, 40), (8, 24, 33, 41)]
    for raw, f, st, t in R:
        for d in range(4):
            unpack(A, f + 2 * d, f + 2 * d + 1, raw + d)
    for raw, f, st, t in R:
        A('v_add_f32 %s, %s, %s' % (v(st), v(f), v(f + 1)))
        for i in range(2, 8):
            A('v_add_f32 %s, %s, %s' % (v(st), v(st), v(f + i)))
    for raw, f, st, t in R:
        wave_allreduce(A, st, t)
    A('s_mov_b32 s27, 0x3b000000')
    for raw, f, st, t in R:
        A('v_mul_f32 %s, s27, %s' % (v(st), v(st)))
        A('v_mov_b32 %s, 0' % v(st + 2))
        for i in range(8):
            A('v_sub_f32 %s, %s, %s' % (v(t), v(f + i), v(st)))
            A('v_fmac_f32 %s, %s, %s' % (v(st + 2), v(t), v(t)))
    for raw, f, st, t in R:
        wave_allreduce(A, st + 2, t)
    A('s_mov_b32 s28, 0x3727c5ac')
    for raw, f, st, t in R:
        A('v_mul_f32 %s, s27, %s' % (v(st + 2), v(st + 2)))
        bf16r(A, st, st)
        bf16r(A, st + 2, st + 2)
        A('v_add_f32 %s, s28, %s' % (v(st + 2), v(st + 2)))
        bf16r(A, st + 2, st + 2)
        A('v_sqrt_f32 %s, %s' % (v(st + 2), v(st + 2)))
        bf16r(A, st + 2, st + 2)
        A('v_rcp_f32 %s, %s' % (v(st + 2), v(st + 2)))
    for raw, f, st, t in R:
        for i in range(8):
            A('v_sub_f32 %s, %s, %s' % (v(f + i), v(f + i), v(st)))
        for d in range(4):
            A('v_cvt_pk_bf16_f32 %s, %s, %s' % (v(raw + d), v(f + 2 * d), v(f + 2 * d + 1)))
        for d in range(4):
            unpack(A, f + 2 * d, f + 2 * d + 1, raw + d)
        for i in range(8):
            A('v_mul_f32 %s, %s, %s' % (v(f + i), v(f + i), v(st + 2)))
        for d in range(4):
            A('v_cvt_pk_bf16_f32 %s, %s, %s' % (v(raw + d), v(f + 2 * d), v(f + 2 * d + 1)))
    A('''
    v_lshrrev_b32 v1, 6, v0
    v_and_b32 v2, 63, v0
    v_lshlrev_b32 v1, 5, v1
    v_lshrrev_b32 v3, 2, v2
    v_lshl_add_u32 v1, v3, 10, v1
    v_and_b32 v3, 3, v2
    v_lshl_add_u32 v1, v3, 8, v1
    s_lshr_b32 s25, s24, 1
    s_lshl_b32 s25, s25, 14
    s_and_b32 s26, s24, 1
    s_lshl_b32 s26, s26, 7
    s_add_u32 s25, s25, s26
    buffer_store_dwordx4 v[4:7], v1, s[16:19], s25 offen
    buffer_store_dwordx4 v[8:11], v1, s[16:19], s25 offen offset:16
    ''')
    A('s_endpgm')
    A.label('K0_PF')
    A.fence()
    A('''
    s_sub_u32 s24, s2, 352
    s_mov_b32 s25, 8
    s_mov_b32 s26, %d
    s_cmp_ge_u32 s24, 24
    s_cbranch_scc0 K0_PFGO
    s_sub_u32 s24, s24, 24
    s_mov_b32 s25, 24
    s_mov_b32 s26, %d
    s_cmp_ge_u32 s24, 8
    s_cbranch_scc0 K0_PFGO
    s_sub_u32 s24, s24, 8
    s_mov_b32 s25, 40
    s_mov_b32 s26, %d
    s_cmp_ge_u32 s24, 22
    s_cbranch_scc0 K0_PFGO
    s_sub_u32 s24, s24, 22
    s_mov_b32 s25, 48
    s_cmp_ge_u32 s24, 22
    s_cbranch_scc0 K0_PFGO
    s_sub_u32 s24, s24, 22
    s_mov_b32 s25, 56
    ''' % (512 * 3072, 512 * 1024, 1376 * 1024))
    A.label('K0_PFGO')
    A('''
    s_add_u32 s4, s0, s25
    s_addc_u32 s5, s1, 0
    s_load_dwordx2 s[12:13], s[4:5], 0
    s_mov_b32 s14, s26
    s_mov_b32 s15, 0x00020000
    s_lshl_b32 s24, s24, 16
    v_lshlrev_b32 v1, 4, v0
    s_waitcnt lgkmcnt(0)
    ''')
    for i in range(16):
        A('buffer_load_dwordx4 %s, v1, s[12:15], s24 offen' % v(16 + 4 * i, 4))
        if i < 15:
            A('s_add_u32 s24, s24, 4096')
    A('s_waitcnt vmcnt(0)')
    A.label('K0_END')
    A('s_endpgm')
    return dict(name=name, grid=450, block=256, lds=9216, vgpr=80, sgpr=32, accum=80)
```

```python
from common import *

RED = 65536
RSTRIDE = 272
RWAVE = 64 * RSTRIDE
K2_LDS = RED + 4 * RWAVE


def reduce_epilogue(A, vm, red_off, xsrd, osrd, gsrd_off_tag, stats):
    pass


def gen_k2(A):
    name = 'k2_wo_kernel'
    kernel_begin(A, name)
    vm = VM(A)
    pf = Prof(A, 2)
    A('''
    s_cmp_ge_u32 s2, 256
    s_cbranch_scc1 K2_END
    ''')
    pf.start()
    A('''
    s_load_dwordx2 s[4:5], s[0:1], 0
    s_load_dwordx2 s[6:7], s[0:1], 24
    s_load_dwordx2 s[8:9], s[0:1], 96
    v_lshrrev_b32 v2, 6, v0
    v_and_b32 v1, 63, v0
    v_readfirstlane_b32 s40, v2
    s_and_b32 s41, s2, 7
    s_lshl_b32 s41, s41, 2
    s_bfe_u32 s42, s2, 0x20003
    s_add_u32 s41, s41, s42
    s_lshr_b32 s42, s2, 5
    s_waitcnt lgkmcnt(0)
    ''')
    srd(A, 12, 4, 2048 * 1024)
    srd(A, 16, 6, 512 * 1024)
    srd(A, 20, 8, 2048 * 2048, WS_PHIQ)
    srd(A, 24, 8, 69632, WS_KVACC)
    srd(A, 28, 8, 12288, WS_MODF)
    srd(A, 32, 8, 2048 * 1024, WS_X1)
    srd(A, 36, 8, 2048 * 64, WS_STATS)
    srd(A, 48, 8, 2048 * 1024, WS_X1S)
    A('''
    v_and_b32 v3, 15, v1
    v_lshrrev_b32 v4, 4, v1
    v_lshlrev_b32 v5, 5, v1
    v_lshlrev_b32 v6, 5, v4
    s_lshl_b32 s43, s40, 14
    s_lshl_b32 s44, s40, 10
    s_add_u32 s44, s44, 65536
    ''')
    RAW = 64
    for hh in range(8):
        A('buffer_load_dwordx4 %s, v5, s[24:27], s43 offen' % v(RAW + hh * 16, 4))
        A('buffer_load_dwordx4 %s, v5, s[24:27], s43 offen offset:16' % v(RAW + hh * 16 + 4, 4))
        A('buffer_load_dwordx4 %s, v6, s[24:27], s44 offen offset:%d' % (v(RAW + hh * 16 + 8, 4), hh * 128))
        A('buffer_load_dwordx4 %s, v6, s[24:27], s44 offen offset:%d' % (v(RAW + hh * 16 + 12, 4), hh * 128 + 16))
        vm.issue('kvz', 4)
        if hh < 7:
            A('s_add_u32 s43, s43, 2048')
    A('''
    v_lshlrev_b32 v7, 4, v1
    s_lshl_b32 s43, s41, 17
    s_lshl_b32 s44, s40, 13
    s_add_u32 s43, s43, s44
    ''')
    PQ = 64
    for hh in range(8):
        for rf in range(4):
            A('s_add_u32 s44, s43, %d' % (rf * 32768 + hh * 1024))
            A('buffer_load_dwordx4 %s, v7, s[20:23], s44 offen' % a(PQ + (rf * 8 + hh) * 4, 4))
            vm.issue('pq')
    A('''
    v_lshrrev_b32 v11, 3, v1
    v_and_b32 v12, 7, v1
    v_lshrrev_b32 v13, 1, v12
    v_bfe_u32 v14, v11, 1, 2
    v_xor_b32 v13, v13, v14
    v_and_b32 v12, 1, v12
    v_lshlrev_b32 v11, 10, v11
    v_lshl_add_u32 v11, v13, 5, v11
    v_lshl_add_u32 v11, v12, 4, v11
    s_lshl_b32 s43, s40, 17
    s_lshl_b32 s44, s42, 7
    s_add_u32 s43, s43, s44
    s_lshl_b32 s44, s40, 14
    ''')
    for i in range(16):
        A('s_mov_b32 m0, s44')
        A('buffer_load_dwordx4 v11, s[16:19], s43 offen lds')
        vm.issue('wo')
        if i < 15:
            A('s_add_u32 s43, s43, 8192')
            A('s_add_u32 s44, s44, 1024')
    pf.stamp('issued')
    A('''
    v_lshrrev_b32 v16, 2, v0
    v_and_b32 v17, 3, v0
    v_lshlrev_b32 v18, 10, v16
    v_lshl_add_u32 v18, v17, 5, v18
    s_lshl_b32 s45, s41, 16
    s_lshl_b32 s44, s42, 7
    s_add_u32 s45, s45, s44
    v_lshlrev_b32 v19, 6, v17
    s_lshl_b32 s46, s42, 8
    s_add_u32 s46, s46, 4096
    ''')
    A('''
    v_lshrrev_b32 v12, 2, v3
    v_lshl_add_u32 v12, v4, 2, v12
    v_lshlrev_b32 v12, 7, v12
    v_and_b32 v13, 3, v3
    v_lshl_add_u32 v12, v13, 3, v12
    s_lshl_b32 s44, s40, 14
    v_add_u32 v12, s44, v12
    v_lshrrev_b32 v13, 3, v3
    v_lshl_add_u32 v13, v4, 1, v13
    v_and_b32 v13, 3, v13
    ''')
    for cf in range(4):
        A('v_xor_b32 v14, %d, v13' % cf)
        A('v_lshl_add_u32 %s, v14, 5, v12' % v(20 + cf))
    for i in range(64):
        A('v_accvgpr_write_b32 %s, 0' % a(i))
    KVB, ZB = 192, 224
    pf.stamp('init')
    vm.wait('kvz')
    pf.stamp('kvz')
    for hh in range(8):
        for q in range(4):
            A('v_cvt_pk_bf16_f32 %s, %s, %s' % (v(KVB + hh * 4 + q), v(RAW + hh * 16 + 2 * q), v(RAW + hh * 16 + 2 * q + 1)))
        for q in range(4):
            A('v_cvt_pk_bf16_f32 %s, %s, %s' % (v(ZB + hh * 4 + q), v(RAW + hh * 16 + 8 + 2 * q), v(RAW + hh * 16 + 8 + 2 * q + 1)))
    vm.wait('wo')
    pf.stamp('wo')
    A('s_mov_b32 s47, 0x358637bd')
    WF = 32
    ND = 64
    O = 128
    T = 144

    def read_wo(t):
        for cf in range(4):
            for half in range(2):
                A('ds_read_b64_tr_b16 %s, %s offset:%d' % (v(WF + (t & 1) * 16 + cf * 4 + half * 2, 2), v(20 + cf), t * 4096 + half * 2048))
    read_wo(0)
    for t in range(4):
        for rf in range(4):
            for h2 in range(2):
                hh = 2 * t + h2
                nd = ND + (rf * 2 + h2) * 8
                A('v_mfma_f32_16x16x32_bf16 %s, %s, %s, 0' % (v(nd, 4), v(KVB + hh * 4, 4), a(PQ + (rf * 8 + hh) * 4, 4)))
                A('v_mfma_f32_16x16x32_bf16 %s, %s, %s, 0' % (v(nd + 4, 4), v(ZB + hh * 4, 4), a(PQ + (rf * 8 + hh) * 4, 4)))
        for q in range(8):
            nd = ND + q * 8
            bf16r(A, T + q, nd + 4)
        for q in range(8):
            A('v_add_f32 %s, s47, %s' % (v(T + q), v(T + q)))
        for q in range(8):
            bf16r(A, T + q, T + q)
        for q in range(8):
            A('v_rcp_f32 %s, %s' % (v(T + q), v(T + q)))
        for q in range(8):
            nd = ND + q * 8
            for r in range(4):
                A('v_mul_f32 %s, %s, %s' % (v(nd + r), v(nd + r), v(T + q)))
            A('v_cvt_pk_bf16_f32 %s, %s, %s' % (v(O + q * 2), v(nd), v(nd + 1)))
            A('v_cvt_pk_bf16_f32 %s, %s, %s' % (v(O + q * 2 + 1), v(nd + 2), v(nd + 3)))
        A('s_waitcnt lgkmcnt(0)')
        if t < 3:
            read_wo(t + 1)
        for rf in range(4):
            for cf in range(4):
                acc = a((rf * 4 + cf) * 4, 4)
                A('v_mfma_f32_16x16x32_bf16 %s, %s, %s, %s' % (acc, v(WF + (t & 1) * 16 + cf * 4, 4), v(O + rf * 4, 4), acc))
    pf.stamp('mfma_done')
    XR, GA = 160, 168
    A('buffer_load_dwordx4 %s, v18, s[12:15], s45 offen' % v(XR, 4))
    A('buffer_load_dwordx4 %s, v18, s[12:15], s45 offen offset:16' % v(XR + 4, 4))
    for q in range(4):
        A('buffer_load_dwordx4 %s, v19, s[28:31], s46 offen offset:%d' % (v(GA + q * 4, 4), q * 16))
    CB1 = 184
    A('s_add_u32 s46, s46, 4096')
    for q in range(4):
        A('buffer_load_dwordx4 %s, v19, s[28:31], s46 offen offset:%d' % (v(CB1 + q * 4, 4), q * 16))
    A('''
    v_mul_u32_u24 v12, %d, v3
    v_lshl_add_u32 v12, v4, 4, v12
    s_mul_i32 s44, s40, %d
    s_add_u32 s44, s44, %d
    v_add_u32 v12, s44, v12
    ''' % (RSTRIDE, RWAVE, RED))
    for rf in range(4):
        for cf in range(4):
            A('ds_write_b128 v12, %s offset:%d' % (a((rf * 4 + cf) * 4, 4), rf * 16 * RSTRIDE + cf * 64))
    A('''
    s_waitcnt lgkmcnt(0)
    s_barrier
    v_mul_u32_u24 v12, %d, v16
    v_lshl_add_u32 v12, v17, 6, v12
    v_add_u32 v12, %d, v12
    ''' % (RSTRIDE, RED))
    pf.stamp('bar')
    Y = 64
    for w in range(4):
        for j in range(4):
            A('ds_read_b128 %s, v12 offset:%d' % (v(Y + w * 16 + j * 4, 4), w * RWAVE + j * 16))
    A('s_waitcnt lgkmcnt(0)')
    for i in range(16):
        A('v_add_f32 %s, %s, %s' % (v(Y + i), v(Y + i), v(Y + 16 + i)))
        A('v_add_f32 %s, %s, %s' % (v(Y + 32 + i), v(Y + 32 + i), v(Y + 48 + i)))
    for i in range(16):
        A('v_add_f32 %s, %s, %s' % (v(Y + i), v(Y + i), v(Y + 32 + i)))
    P = 128
    for d in range(8):
        A('v_cvt_pk_bf16_f32 %s, %s, %s' % (v(P + d), v(Y + 2 * d), v(Y + 2 * d + 1)))
    for d in range(8):
        unpack(A, Y + 2 * d, Y + 2 * d + 1, P + d)
    A('s_waitcnt vmcnt(0)')
    for i in range(16):
        A('v_mul_f32 %s, %s, %s' % (v(Y + i), v(Y + i), v(GA + i)))
    for d in range(8):
        A('v_cvt_pk_bf16_f32 %s, %s, %s' % (v(P + d), v(Y + 2 * d), v(Y + 2 * d + 1)))
    for d in range(8):
        unpack(A, Y + 2 * d, Y + 2 * d + 1, P + d)
    XF = 96
    for d in range(8):
        unpack(A, XF + 2 * d, XF + 2 * d + 1, XR + d)
    for i in range(16):
        A('v_add_f32 %s, %s, %s' % (v(Y + i), v(Y + i), v(XF + i)))
    for d in range(8):
        A('v_cvt_pk_bf16_f32 %s, %s, %s' % (v(P + d), v(Y + 2 * d), v(Y + 2 * d + 1)))
    A('''
    v_lshrrev_b32 v12, 4, v16
    v_lshlrev_b32 v12, 14, v12
    v_lshl_add_u32 v12, v17, 9, v12
    v_and_b32 v13, 15, v16
    v_lshl_add_u32 v12, v13, 4, v12
    s_lshl_b32 s44, s41, 16
    s_lshl_b32 s43, s42, 11
    s_add_u32 s44, s44, s43
    ''')
    A('buffer_store_dwordx4 %s, v12, s[32:35], s44 offen' % v(P, 4))
    A('buffer_store_dwordx4 %s, v12, s[32:35], s44 offen offset:256' % v(P + 4, 4))
    for d in range(8):
        unpack(A, Y + 2 * d, Y + 2 * d + 1, P + d)
    for i in range(0, 16, 2):
        A('v_pk_mul_f32 %s, %s, %s' % (v(XF + i, 2), v(Y + i, 2), v(CB1 + i, 2)))
    for d in range(8):
        A('v_cvt_pk_bf16_f32 %s, %s, %s' % (v(144 + d), v(XF + 2 * d), v(XF + 2 * d + 1)))
    A('buffer_store_dwordx4 %s, v12, s[48:51], s44 offen' % v(144, 4))
    A('buffer_store_dwordx4 %s, v12, s[48:51], s44 offen offset:256' % v(148, 4))
    S, M2, TT = 140, 141, 142
    A('v_add_f32 %s, %s, %s' % (v(S), v(Y), v(Y + 1)))
    for i in range(2, 16):
        A('v_add_f32 %s, %s, %s' % (v(S), v(S), v(Y + i)))
    A('v_add_f32_dpp %s, %s, %s quad_perm:[1,0,3,2] row_mask:0xf bank_mask:0xf' % (v(TT), v(S), v(S)))
    A('v_add_f32_dpp %s, %s, %s quad_perm:[2,3,0,1] row_mask:0xf bank_mask:0xf' % (v(S), v(TT), v(TT)))
    A('v_mul_f32 %s, 0x3c800000, %s' % (v(TT + 1), v(S)))
    A('v_mov_b32 %s, 0' % v(M2))
    for i in range(16):
        A('v_sub_f32 %s, %s, %s' % (v(Y + i), v(Y + i), v(TT + 1)))
    for i in range(16):
        A('v_fmac_f32 %s, %s, %s' % (v(M2), v(Y + i), v(Y + i)))
    A('v_add_f32_dpp %s, %s, %s quad_perm:[1,0,3,2] row_mask:0xf bank_mask:0xf' % (v(TT), v(M2), v(M2)))
    A('v_add_f32_dpp %s, %s, %s quad_perm:[2,3,0,1] row_mask:0xf bank_mask:0xf' % (v(M2), v(TT), v(TT)))
    A('''
    v_lshlrev_b32 v12, 6, v16
    s_lshl_b32 s44, s41, 12
    s_lshl_b32 s43, s42, 3
    s_add_u32 s44, s44, s43
    buffer_store_dwordx2 v[140:141], v12, s[36:39], s44 offen
    ''')
    pf.finish()
    A.label('K2_END')
    A('s_endpgm')
    return dict(name=name, grid=256, block=256, lds=K2_LDS, vgpr=256 + 192, sgpr=102 if PROF else 52, accum=256)
```

```python
from common import *

UOFF = 6144 + 32
SLOT = 8192 + UOFF + 6144 + 32
NS = 7
CONST3 = NS * SLOT + 256
URED = CONST3 + 2048
K3_LDS = URED + 1536


def row_stats(A, ST, rs, nm, t0, t1, t2, sm):
    A('v_add_f32 %s, %s, %s' % (v(sm), v(ST), v(ST + 2)))
    for i in range(2, 8):
        A('v_add_f32 %s, %s, %s' % (v(sm), v(sm), v(ST + 2 * i)))
    A('v_mul_f32 %s, 0x3b000000, %s' % (v(sm), v(sm)))
    A('v_add_f32 %s, %s, %s' % (v(t1), v(ST + 1), v(ST + 3)))
    for i in range(2, 8):
        A('v_add_f32 %s, %s, %s' % (v(t1), v(t1), v(ST + 2 * i + 1)))
    A('v_mov_b32 %s, 0' % v(t2))
    for i in range(8):
        A('v_mul_f32 %s, 0x3c800000, %s' % (v(t0), v(ST + 2 * i)))
        A('v_sub_f32 %s, %s, %s' % (v(t0), v(t0), v(sm)))
        A('v_fmac_f32 %s, %s, %s' % (v(t2), v(t0), v(t0)))
    A('v_mov_b32 %s, 0x42800000' % v(t0))
    A('v_fmac_f32 %s, %s, %s' % (v(t1), v(t2), v(t0)))
    A('v_mul_f32 %s, 0x3b000000, %s' % (v(t1), v(t1)))
    bf16r(A, sm, sm)
    bf16r(A, t1, t1)
    A('v_add_f32 %s, 0x3727c5ac, %s' % (v(t1), v(t1)))
    bf16r(A, t1, t1)
    A('v_sqrt_f32 %s, %s' % (v(t1), v(t1)))
    bf16r(A, t1, t1)
    A('v_rcp_f32 %s, %s' % (v(rs), v(t1)))
    A('v_sub_f32 %s, 0, %s' % (v(nm), v(sm)))
    A('v_mov_b32 %s, %s' % (v(rs + 1), v(rs)))
    A('v_mov_b32 %s, %s' % (v(nm + 1), v(nm)))


def gen_k3(A):
    name = 'k3_ffn1_kernel'
    kernel_begin(A, name)
    pf = Prof(A, 3)
    X = os.environ.get('K3X', '')
    A("""
    s_cmp_ge_u32 s2, 240
    s_cbranch_scc1 K3_END
    """)
    pf.start()
    A("""
    s_load_dwordx4 s[4:7], s[0:1], 40
    s_load_dwordx2 s[8:9], s[0:1], 96
    v_lshrrev_b32 v2, 6, v0
    v_and_b32 v1, 63, v0
    v_readfirstlane_b32 s40, v2
    s_and_b32 s41, s2, 3
    s_mul_i32 s41, s41, 30
    s_lshr_b32 s42, s2, 3
    s_add_u32 s43, s41, s42
    s_lshr_b32 s42, s43, 3
    s_and_b32 s41, s43, 7
    s_bfe_u32 s43, s2, 0x10002
    s_lshl_b32 s43, s43, 3
    s_add_u32 s41, s41, s43
    s_and_b32 s38, s40, 3
    s_lshr_b32 s39, s40, 2
    s_cmp_lt_u32 s40, 8
    s_cbranch_scc1 K3_COMP
    """)
    if 'Z' in X:
        A('s_mov_b32 s41, 0')
    if 'Y' in X:
        A('s_mov_b32 s42, 0')
    for j in range(3):
        A("""
        v_add_u32 v2, %d, v1
        v_mul_u32_u24 v3, 43691, v2
        v_lshrrev_b32 v3, 19, v3
        v_mul_u32_u24 v4, 12, v3
        v_sub_u32 v4, v2, v4
        v_mul_u32_u24 v3, 2752, v3
        v_lshl_add_u32 %s, v4, 4, v3
        """ % (j * 64, v(9 + j)))
    A("""
    v_lshlrev_b32 v7, 4, v1
    v_add_u32 v8, 16384, v7
    s_and_b32 s43, s38, 1
    s_mul_i32 s47, s43, %d
    s_mul_i32 s44, s42, 192
    s_add_u32 s47, s47, s44
    s_mul_i32 s48, s43, 3072
    s_lshr_b32 s43, s38, 1
    s_mul_i32 s43, s43, %d
    s_add_u32 s48, s48, s43
    s_add_u32 s48, s48, 8192
    s_lshl_b32 s46, s41, 17
    s_lshl_b32 s43, s38, 15
    s_add_u32 s46, s46, s43
    s_lshl_b32 s49, s38, 11
    s_mov_b32 s50, 0
    s_mov_b32 s51, 0
    s_mov_b32 s52, 3
    s_mov_b32 s53, 0
    s_mov_b32 s54, 0
    s_cmp_lt_u32 s38, 2
    s_waitcnt lgkmcnt(0)
    s_cselect_b32 s4, s4, s6
    s_cselect_b32 s5, s5, s7
    """ % (16 * 2752, UOFF))
    srd(A, 16, 4, 512 * 2752)
    srd(A, 12, 8, 2048 * 1024, WS_X1S)
    srd(A, 24, 8, 6144, WS_MODB)
    A("""
    s_cmp_gt_u32 s38, 1
    s_cbranch_scc1 K3_LI
    s_lshl_b32 s43, s38, 10
    s_add_u32 m0, s43, %d
    s_sub_u32 s43, 4096, s43
    buffer_load_dwordx4 v7, s[24:27], s43 offen lds
    """ % CONST3)
    def issue():
        A("""
        s_add_u32 s43, s50, s49
        s_add_u32 s44, s50, s48
        s_mov_b32 m0, s43
        s_add_u32 s50, s50, %d
        buffer_load_dwordx4 v7, s[12:15], s46 offen lds
        s_mov_b32 m0, s44
        s_cmp_eq_u32 s50, %d
        buffer_load_dwordx4 v9, s[16:19], s47 offen lds
        s_cselect_b32 s50, 0, s50
        s_add_u32 m0, s43, 1024
        s_nop 0
        buffer_load_dwordx4 v8, s[12:15], s46 offen lds
        s_add_u32 m0, s44, 1024
        s_add_u32 s46, s46, 1024
        buffer_load_dwordx4 v10, s[16:19], s47 offen lds
        s_add_u32 m0, s44, 2048
        s_nop 0
        buffer_load_dwordx4 v11, s[16:19], s47 offen lds
        s_add_u32 s47, s47, %d
        """ % (SLOT, NS * SLOT, 32 * 2752))
    A.label('K3_LI')
    issue()
    A("""
    s_sub_u32 s52, s52, 1
    s_cmp_lg_u32 s52, 0
    s_cbranch_scc1 K3_LI
    s_mov_b32 s52, 2
    s_add_u32 s54, s54, 1
    s_cmp_eq_u32 s54, 4
    s_cbranch_scc1 K3_LS
    s_cmp_eq_u32 s54, 3
    s_cbranch_scc1 K3_LW4
    s_cmp_eq_u32 s54, 2
    s_cbranch_scc1 K3_LW3
    s_waitcnt vmcnt(10)
    """)
    A.label('K3_LW3')
    A('s_waitcnt vmcnt(15)')
    A.label('K3_LW4')
    A("""
    s_waitcnt vmcnt(20)
    s_barrier
    s_branch K3_LI
    """)
    A.label('K3_LS')
    A.fence()
    A("""
    s_waitcnt vmcnt(25)
    s_barrier
    """)
    issue()
    A("""
    s_add_u32 s54, s54, 1
    s_cmp_lt_u32 s54, 11
    s_cbranch_scc1 K3_LS
    """)
    for n in (25, 20, 15, 10, 5, 0):
        A('s_waitcnt vmcnt(%d)' % n)
        A('s_barrier')
    A("""
    s_barrier
    s_barrier
    s_endpgm
    """)
    A.label('K3_COMP')
    A.fence()
    A("""
    v_and_b32 v2, 31, v1
    v_lshlrev_b32 v2, 6, v2
    s_lshl_b32 s43, s41, 13
    s_lshl_b32 s44, s38, 11
    s_add_u32 s43, s43, s44
    s_waitcnt lgkmcnt(0)
    """)
    srd(A, 28, 8, 2048 * 64, WS_STATS)
    ST = 144
    for q in range(4):
        A('buffer_load_dwordx4 %s, v2, s[28:31], s43 offen offset:%d' % (v(ST + q * 4, 4), q * 16))
    if 'P' in X:
        A("""
        s_cmp_eq_u32 s39, 0
        s_cbranch_scc0 K3_PFW
        """)
        srd(A, 12, 8, 2048 * 1024, WS_X1S)
        A("""
        s_lshl_b32 s43, s41, 17
        s_and_b32 s44, s42, 3
        s_lshl_b32 s44, s44, 15
        s_add_u32 s43, s43, s44
        s_lshl_b32 s44, s38, 13
        s_add_u32 s43, s43, s44
        v_lshlrev_b32 v2, 7, v1
        s_branch K3_PFG
        """)
        A.label('K3_PFW')
        A("""
        s_cmp_lt_u32 s38, 2
        s_cselect_b32 s12, s4, s6
        s_cselect_b32 s13, s5, s7
        s_mov_b32 s14, %d
        s_mov_b32 s15, 0x00020000
        s_and_b32 s43, s41, 7
        s_mul_i32 s43, s43, %d
        s_mul_i32 s44, s42, 192
        s_add_u32 s43, s43, s44
        s_and_b32 s44, s38, 1
        s_lshl_b32 s44, s44, 7
        s_add_u32 s43, s43, s44
        v_mul_u32_u24 v2, 2752, v1
        """ % (512 * 2752, 64 * 2752))
        A.label('K3_PFG')
        A('buffer_load_dword v167, v2, s[12:15], s43 offen')
    srd(A, 32, 8, 2048 * 2752, WS_HH)
    A("""
    v_bfe_u32 v2, v1, 4, 1
    v_lshrrev_b32 v3, 5, v1
    v_and_b32 v13, 15, v1
    v_lshl_add_u32 v4, v3, 4, v13
    v_lshlrev_b32 v4, 4, v4
    v_mul_u32_u24 v12, %d, v2
    v_add_u32 v12, v12, v4
    v_lshl_add_u32 v4, v2, 10, v4
    s_lshl_b32 s43, s38, 11
    v_add_u32 v4, s43, v4
    v_lshrrev_b32 v5, 2, v13
    v_lshl_add_u32 v5, v3, 3, v5
    v_mul_u32_u24 v5, 192, v5
    v_mul_u32_u24 v14, %d, v2
    v_add_u32 v5, v5, v14
    v_and_b32 v13, 3, v1
    v_lshl_add_u32 v5, v13, 3, v5
    s_mul_i32 s43, s39, 96
    s_add_u32 s43, s43, 8192
    v_add_u32 v5, s43, v5
    s_mov_b32 s53, 0
    s_mov_b32 s51, 0
    s_lshl_b32 s43, s38, 2
    s_add_u32 s43, s43, %d
    v_lshlrev_b32 v6, 4, v3
    v_add_u32 v6, s43, v6
    v_add_u32 v7, 1024, v6
    """ % (43 * 1024, UOFF, CONST3 - 64))
    U, CC = 16, 24
    for i in range(6):
        A('v_mov_b32 %s, 0' % v(U + i))
    A('v_lshlrev_b32 v2, 2, v1')
    A('v_add_u32 v2, %d, v2' % (CONST3 - 256))
    A('ds_write_b32 v2, v16')
    XF = lambda s_: 32 + 32 * s_
    WF = lambda s_: 40 + 32 * s_
    ACC = 96
    RS, NM = 160, 162
    for i in range(48):
        A('v_mov_b32 %s, 0' % v(ACC + i))
    for i in range(32):
        A('v_mov_b32 %s, 0' % v(XF(1) + i))

    def reads(st, va, vw):
        L = []
        for q in range(2):
            L.append('ds_read_b128 %s, %s offset:%d' % (v(XF(st) + q * 4, 4), va, q * 512))
            for c in range(3):
                for e in range(2):
                    L.append('ds_read_b64_tr_b16 %s, %s offset:%d' % (v(WF(st) + c * 8 + q * 4 + e * 2, 2), vw, (16 * q + 4 * e) * 192 + c * 32))
        return L

    def mfmas(st):
        L = []
        for q in range(2):
            for c in range(3):
                acc = v(ACC + c * 16, 16)
                L.append('v_mfma_f32_32x32x16_bf16 %s, %s, %s, %s' % (acc, v(WF(st) + c * 8 + q * 4, 4), v(XF(st) + q * 4, 4), acc))
        return L
    def udot(st, lg):
        if 'D' in X:
            return
        A('s_waitcnt lgkmcnt(%d)' % lg)
        A('s_set_gpr_idx_on s38, 0x1')
        for q in range(2):
            for c in range(3):
                w = v(WF(st) + c * 8 + q * 4)
                A('v_dot2_f32_bf16 %s, %s, %s, %s' % (v(U + c * 2), w, v(CC + q), v(U + c * 2)))
                A('v_dot2_f32_bf16 %s, %s, %s, %s' % (v(U + c * 2 + 1), w, v(CC + 2 + q), v(U + c * 2 + 1)))
        A('s_set_gpr_idx_off')
    A('s_waitcnt vmcnt(%d)' % (1 if 'P' in X else 0))
    row_stats(A, ST, RS, NM, 164, 165, 166, 15)
    pf.stamp('init')
    A.label('K3_LOOP')
    for P in range(2):
        A.fence()
        A('v_add_u32 v10, s53, v4')
        A('v_add_u32 v11, s53, v5')
        A('s_waitcnt lgkmcnt(0)')
        A('s_barrier')
        M = mfmas(P ^ 1)
        R = reads(P, 'v10', 'v11')
        if 'M' in X:
            M = ['s_nop 0'] * 6
        if 'F' in X:
            R = ['s_nop 0' for r_ in R]
        A(M[0])
        A('ds_read2_b32 %s, v6 offset0:%d offset1:%d' % (v(CC, 2), P * 16, P * 16 + 8))
        A('ds_read2_b32 %s, v7 offset0:%d offset1:%d' % (v(CC + 2, 2), P * 16, P * 16 + 8))
        for ins in R[:4]:
            A(ins)
        A(M[1])
        for ins in R[4:9]:
            A(ins)
        A(M[2])
        for ins in R[9:]:
            A(ins)
        A(M[3])
        udot(P ^ 1, 14)
        A("""
        s_add_u32 s53, s53, %d
        s_cmp_eq_u32 s53, %d
        """ % (SLOT, NS * SLOT))
        A(M[4])
        A('s_cselect_b32 s53, 0, s53')
        if P == 1:
            A('v_add_u32 v6, 128, v6')
            A('v_add_u32 v7, 128, v7')
            A('s_add_u32 s51, s51, 1')
            A('s_cmp_lt_u32 s51, 8')
        A(M[5])
    A('s_cbranch_scc1 K3_LOOP')
    A('ds_read2_b32 %s, v6 offset0:0 offset1:8' % v(CC, 2))
    A('ds_read2_b32 %s, v7 offset0:0 offset1:8' % v(CC + 2, 2))
    A('s_waitcnt lgkmcnt(2)')
    for ins in mfmas(1):
        A(ins)
    udot(1, 0)
    pf.stamp('mfma_done')
    for i in range(6):
        A('v_mov_b32 %s, %s' % (v(32 + i), v(U + i)))
    for i in range(6):
        A('v_permlane32_swap_b32 %s, %s' % (v(32 + i), v(U + i)))
    for i in range(6):
        A('v_add_f32 %s, %s, %s' % (v(U + i), v(U + i), v(32 + i)))
    A("""
    v_and_b32 v2, 31, v1
    v_lshlrev_b32 v2, 2, v2
    s_mul_i32 s43, s40, 768
    v_add_u32 v2, s43, v2
    """)
    for i in range(6):
        A('ds_write_b32 v2, %s offset:%d' % (v(U + i), i * 128))
    A("""
    s_mul_i32 s43, s39, 3072
    s_mul_i32 s44, s38, 192
    s_add_u32 s43, s43, s44
    v_lshlrev_b32 v2, 2, v1
    v_add_u32 v2, s43, v2
    s_mul_i32 s43, s39, 768
    s_add_u32 s43, s43, s44
    s_add_u32 s43, s43, %d
    v_lshlrev_b32 v3, 2, v1
    v_add_u32 v3, s43, v3
    s_waitcnt lgkmcnt(0)
    s_barrier
    ds_read_b32 v32, v2
    ds_read_b32 v33, v2 offset:768
    ds_read_b32 v34, v2 offset:1536
    ds_read_b32 v35, v2 offset:2304
    v_cmp_gt_u32 vcc, 48, v1
    s_waitcnt lgkmcnt(0)
    v_add_f32 v32, v32, v33
    v_add_f32 v34, v34, v35
    v_add_f32 v32, v32, v34
    s_and_saveexec_b64 s[44:45], vcc
    ds_write_b32 v3, v32
    s_mov_b64 exec, s[44:45]
    """ % URED)
    A("""
    v_lshrrev_b32 v3, 5, v1
    v_lshlrev_b32 v3, 4, v3
    s_mul_i32 s43, s39, 768
    s_add_u32 s43, s43, %d
    v_add_u32 v3, s43, v3
    s_mov_b32 s54, 0xc0135761
    s_mov_b32 s55, 0xc0135761
    s_mov_b32 s56, 0xbdd2d3e8
    s_mov_b32 s57, 0xbdd2d3e8
    s_mul_i32 s44, s42, 6
    s_mul_i32 s43, s39, 3
    s_add_u32 s44, s44, s43
    s_mul_i32 s43, s41, %d
    s_mul_i32 s45, s38, %d
    s_add_u32 s43, s43, s45
    s_mov_b32 s45, 0
    v_mov_b32 v22, s54
    v_mov_b32 v23, s54
    s_waitcnt lgkmcnt(0)
    s_barrier
    """ % (URED, 8 * 43 * 1024, 2 * 43 * 1024))
    pf.stamp('ured')
    A.label('K3_EPI')
    A.fence()
    A('''
    s_cmp_ge_u32 s44, 86
    s_cbranch_scc1 K3_FIN
    ''')
    U1, U2, G, E, PK = 32, 48, 64, 80, 88
    for j in range(4):
        A('ds_read_b128 %s, v3 offset:%d' % (v(U1 + j * 4, 4), j * 32))
        A('ds_read_b128 %s, v3 offset:%d' % (v(U2 + j * 4, 4), 128 + j * 32))
    A('''
    s_lshr_b32 s46, s44, 1
    s_lshl_b32 s46, s46, 10
    s_and_b32 s47, s44, 1
    s_lshl_b32 s47, s47, 9
    s_add_u32 s46, s46, s47
    s_add_u32 s46, s46, s43
    v_add_u32 v3, 256, v3
    s_waitcnt lgkmcnt(0)
    s_set_gpr_idx_on s45, 0x4
    ''')
    for p in range(8):
        A('v_pk_fma_f32 %s, %s, %s, %s' % (v(G + 2 * p, 2), v(U1 + 2 * p, 2), v(NM, 2), v(ACC + 2 * p, 2)))
    A('s_set_gpr_idx_off')
    for p in range(8):
        A('v_pk_fma_f32 %s, %s, %s, %s' % (v(G + 2 * p, 2), v(G + 2 * p, 2), v(RS, 2), v(U2 + 2 * p, 2)))
    for p in range(4):
        A('v_pk_mul_f32 %s, %s, %s' % (v(E + 2 * p, 2), v(G + 2 * p, 2), v(G + 2 * p, 2)))
    for p in range(4):
        A('v_pk_fma_f32 %s, %s, s[56:57], v[22:23]' % (v(E + 2 * p, 2), v(E + 2 * p, 2)))
    for p in range(4):
        A('v_pk_mul_f32 %s, %s, %s' % (v(E + 2 * p, 2), v(E + 2 * p, 2), v(G + 2 * p, 2)))
    for i in range(8):
        A('v_exp_f32 %s, %s' % (v(E + i), v(E + i)))
        if i % 2 == 1:
            p = i // 2
            A('v_pk_mul_f32 %s, %s, %s' % (v(G + 2 * p, 2), v(G + 2 * p, 2), v(G + 8 + 2 * p, 2)))
    for p in range(4):
        A('v_pk_add_f32 %s, %s, 1.0 op_sel_hi:[1,0]' % (v(E + 2 * p, 2), v(E + 2 * p, 2)))
    for i in range(8):
        A('v_rcp_f32 %s, %s' % (v(E + i), v(E + i)))
    for p in range(4):
        A('v_pk_mul_f32 %s, %s, %s' % (v(G + 2 * p, 2), v(G + 2 * p, 2), v(E + 2 * p, 2)))
    for p in range(4):
        A('v_cvt_pk_bf16_f32 %s, %s, %s' % (v(PK + p), v(G + 2 * p), v(G + 2 * p + 1)))
    A('buffer_store_dwordx4 %s, v12, s[32:35], s46 offen' % v(PK, 4))
    A('''
    s_add_u32 s44, s44, 1
    s_add_u32 s45, s45, 16
    s_cmp_lt_u32 s45, 48
    s_cbranch_scc1 K3_EPI
    ''')
    A.label('K3_FIN')
    pf.finish()
    A.label('K3_END')
    A('s_endpgm')
    if 'B' in X:
        L_ = A.lines
        i0 = max(i for i, l in enumerate(L_) if l.startswith('k3_ffn1_kernel:'))
        idx = [i for i in range(i0, len(L_)) if L_[i].strip() == 's_barrier']
        ic = [i for i, l in enumerate(L_) if l.startswith('K3_COMP:')][0]
        lo = [i for i in idx if i < ic][:-2]
        co = [i for i in idx if i > ic][:-2]
        for i in lo + co:
            L_[i] = '    s_nop 0'
    return dict(name=name, grid=240, block=768, lds=K3_LDS, vgpr=168, sgpr=102 if PROF else 58, accum=168)
```

```python
from common import *

SLOT = 8192
NS = 4
DEP = NS - 1
K4_LDS = 4 * NS * SLOT


def exchange_reduce(A, Y, T, s_w, s_base, wstride, v_lane16):
    A('v_add_u32 %s, %s, %s' % (v(T + 48), s_base, v_lane16))
    for r in range(1, 4):
        for cf in range(4):
            A('ds_write_b128 %s, %s offset:%d' % (v(T + 48), a(r * 16 + cf * 4, 4), (r - 1) * 4096 + cf * 1024))
    for i in range(16):
        A('v_accvgpr_read_b32 %s, %s' % (v(Y + i), a(i)))
    for r in range(1, 4):
        A('s_sub_u32 s44, %s, %d' % (s_w, r))
        A('s_and_b32 s44, s44, 3')
        A('s_mul_i32 s44, s44, %d' % wstride)
        A('v_add_u32 %s, s44, %s' % (v(Y + 15 + r), v_lane16))
    A('s_waitcnt lgkmcnt(0)')
    A('s_barrier')
    for r in range(1, 4):
        for cf in range(4):
            A('ds_read_b128 %s, %s offset:%d' % (v(T + (r - 1) * 16 + cf * 4, 4), v(Y + 15 + r), (r - 1) * 4096 + cf * 1024))
    A('s_waitcnt lgkmcnt(4)')
    for i in range(0, 16, 2):
        A('v_pk_add_f32 %s, %s, %s' % (v(T + i, 2), v(T + i, 2), v(T + 16 + i, 2)))
    A('s_waitcnt lgkmcnt(0)')
    for i in range(0, 16, 2):
        A('v_pk_add_f32 %s, %s, %s' % (v(Y + i, 2), v(Y + i, 2), v(T + 32 + i, 2)))
    for i in range(0, 16, 2):
        A('v_pk_add_f32 %s, %s, %s' % (v(Y + i, 2), v(Y + i, 2), v(T + i, 2)))


def gen_k4(A):
    name = 'k4_ffn2_kernel'
    kernel_begin(A, name)
    pf = Prof(A, 4)
    A('''
    s_cmp_ge_u32 s2, 256
    s_cbranch_scc1 K4_END
    ''')
    pf.start()
    A('''
    s_load_dwordx2 s[4:5], s[0:1], 56
    s_load_dwordx2 s[8:9], s[0:1], 96
    s_load_dwordx2 s[6:7], s[0:1], 80
    v_lshrrev_b32 v2, 6, v0
    v_and_b32 v1, 63, v0
    v_readfirstlane_b32 s40, v2
    s_and_b32 s41, s2, 7
    s_lshl_b32 s41, s41, 2
    s_bfe_u32 s42, s2, 0x20003
    s_add_u32 s41, s41, s42
    s_lshr_b32 s42, s2, 5
    v_lshlrev_b32 v9, 4, v1
    s_mul_i32 s44, s40, 44032
    v_add_u32 v5, s44, v9
    s_add_u32 s44, s40, 1
    s_and_b32 s44, s44, 3
    s_mul_i32 s44, s44, 44032
    v_add_u32 v6, s44, v9
    s_add_u32 s44, s40, 2
    s_and_b32 s44, s44, 3
    s_mul_i32 s44, s44, 44032
    v_add_u32 v7, s44, v9
    s_add_u32 s44, s40, 3
    s_and_b32 s44, s44, 3
    s_mul_i32 s44, s44, 44032
    v_add_u32 v8, s44, v9
    s_mul_i32 s43, s41, %d
    s_mul_i32 s44, s40, 11264
    s_add_u32 s43, s43, s44
    v_lshrrev_b32 v12, 3, v1
    v_and_b32 v13, 7, v1
    v_lshrrev_b32 v14, 1, v13
    v_and_b32 v13, 1, v13
    v_bfe_u32 v15, v12, 1, 2
    v_xor_b32 v14, v14, v15
    v_lshlrev_b32 v12, 10, v12
    v_lshl_add_u32 v12, v13, 4, v12
    v_lshl_add_u32 v10, v14, 5, v12
    v_add_u32 v11, 8192, v10
    v_add_u32 v12, 16384, v10
    v_add_u32 v13, 24576, v10
    s_mul_i32 s45, s40, %d
    s_lshl_b32 s44, s42, 7
    s_add_u32 s45, s45, s44
    s_mul_i32 s46, s40, %d
    s_mov_b32 s47, 0
    s_mov_b32 s48, 0
    s_mov_b32 s49, %d
    s_cmp_eq_u32 s40, 3
    s_cselect_b32 s50, 10, 11
    v_and_b32 v3, 15, v1
    v_lshrrev_b32 v4, 4, v1
    s_waitcnt lgkmcnt(0)
    ''' % (4 * 43 * 1024, 11 * 32768, NS * SLOT, -DEP))
    srd(A, 12, 8, 2048 * 2752, WS_HH)
    srd(A, 16, 4, 1376 * 1024)
    srd(A, 20, 8, 2048 * 1024, WS_X1)
    srd(A, 24, 8, 12288, WS_MODF)
    srd(A, 28, 6, 2048 * 1024)
    XR, GA = 96, 104
    A('''
    v_lshrrev_b32 v14, 1, v4
    v_lshl_add_u32 v14, v14, 4, v3
    v_lshlrev_b32 v14, 4, v14
    v_and_b32 v15, 1, v4
    v_lshl_add_u32 v16, v15, 3, v14
    s_lshl_b32 s52, s41, 2
    s_add_u32 s52, s52, s40
    s_lshl_b32 s52, s52, 14
    s_lshl_b32 s44, s42, 11
    s_add_u32 s53, s52, s44
    v_lshlrev_b32 v17, 4, v4
    s_lshl_b32 s51, s42, 8
    s_add_u32 s51, s51, 10240
    ''')
    for cf in range(4):
        A('buffer_load_dwordx2 %s, v16, s[20:23], s53 offen offset:%d' % (v(XR + cf * 2, 2), (cf >> 1) * 1024 + (cf & 1) * 512))
        A('buffer_load_dwordx4 %s, v17, s[24:27], s51 offen offset:%d' % (v(GA + cf * 4, 4), cf * 64))
    WF, AF = 32, 48

    def issue():
        A('s_add_u32 s51, s46, s47')
        for i in range(4):
            A('s_add_u32 m0, s51, %d' % (i * 1024))
            if os.environ.get('K4X') == 'A':
                A('buffer_load_dwordx4 %s, s[12:15], s43 offen lds' % v(5 + i))
            else:
                A('buffer_load_dwordx4 %s, s[16:19], s45 offen lds' % v(10 + i))
            A('s_add_u32 m0, s51, %d' % (4096 + i * 1024))
            if os.environ.get('K4X') == 'W':
                A('buffer_load_dwordx4 %s, s[16:19], s45 offen lds' % v(10 + i))
            else:
                A('buffer_load_dwordx4 %s, s[12:15], s43 offen lds' % v(5 + i))
        A('''
        s_add_u32 s45, s45, 32768
        s_add_u32 s43, s43, 1024
        s_add_u32 s47, s47, %d
        s_cmp_eq_u32 s47, %d
        s_cselect_b32 s47, 0, s47
        ''' % (SLOT, NS * SLOT))
    A.label('K4_PRE')
    issue()
    A('''
    s_add_u32 s49, s49, 1
    s_cmp_lt_i32 s49, 0
    s_cbranch_scc1 K4_PRE
    ''')
    pf.stamp('issued')
    A('''
    v_lshrrev_b32 v14, 2, v3
    v_and_b32 v15, 1, v4
    v_lshl_add_u32 v14, v15, 2, v14
    v_lshrrev_b32 v15, 1, v4
    v_lshl_add_u32 v14, v15, 4, v14
    v_lshlrev_b32 v14, 7, v14
    v_and_b32 v15, 3, v3
    v_lshl_add_u32 v14, v15, 3, v14
    v_add_u32 v14, s46, v14
    v_lshrrev_b32 v15, 3, v3
    v_lshl_add_u32 v15, v4, 1, v15
    v_and_b32 v15, 3, v15
    ''')
    for cf in range(4):
        A('v_xor_b32 v18, %d, v15' % cf)
        A('v_lshl_add_u32 %s, v18, 5, v14' % v(20 + cf))
    A('''
    s_add_u32 s44, s46, 4096
    v_add_u32 v24, s44, v9
    v_lshlrev_b32 v18, 10, v3
    v_lshl_add_u32 v18, v4, 3, v18
    s_lshl_b32 s44, s42, 7
    s_add_u32 s52, s52, s44
    ''')
    for i in range(64):
        A('v_accvgpr_write_b32 %s, 0' % a(i))
    A.label('K4_LOOP')
    A('s_sub_u32 s44, s50, s49')
    for r in range(DEP - 1, 0, -1):
        A('s_cmp_gt_u32 s44, %d' % r)
        A('s_cbranch_scc1 K4_W%d' % r)
    A('s_waitcnt vmcnt(0)')
    for r in range(1, DEP):
        A.label('K4_W%d' % r)
        A('s_waitcnt vmcnt(%d)' % (8 * r))
    for i in range(5):
        A('v_add_u32 %s, s48, %s' % (v(26 + i), v(20 + i)))
    for cf in range(4):
        for half in range(2):
            A('ds_read_b64_tr_b16 %s, %s offset:%d' % (v(WF + cf * 4 + half * 2, 2), v(26 + cf), half * 1024))
    for rf in range(4):
        A('ds_read_b128 %s, v30 offset:%d' % (v(AF + rf * 4, 4), rf * 1024))
    A('''
    s_cmp_le_u32 s44, %d
    s_cbranch_scc1 K4_SKIP
    ''' % DEP)
    issue()
    A.label('K4_SKIP')
    A('s_waitcnt lgkmcnt(0)')
    for rf in range(4):
        for cf in range(4):
            acc = a((rf * 4 + cf) * 4, 4)
            A('v_mfma_f32_16x16x32_bf16 %s, %s, %s, %s' % (acc, v(WF + cf * 4, 4), v(AF + rf * 4, 4), acc))
    A('''
    s_add_u32 s48, s48, %d
    s_cmp_eq_u32 s48, %d
    s_cselect_b32 s48, 0, s48
    s_add_u32 s49, s49, 1
    s_cmp_lt_i32 s49, s50
    s_cbranch_scc1 K4_LOOP
    ''' % (SLOT, NS * SLOT))
    pf.stamp('mfma_done')
    A('s_nop 7')
    Y = 64
    exchange_reduce(A, Y, 128, 's40', 's46', NS * SLOT, 'v9')
    pf.stamp('red')
    P = 128
    for d in range(8):
        A('v_cvt_pk_bf16_f32 %s, %s, %s' % (v(P + d), v(Y + 2 * d), v(Y + 2 * d + 1)))
    for d in range(8):
        unpack(A, Y + 2 * d, Y + 2 * d + 1, P + d)
    for i in range(0, 16, 2):
        A('v_pk_mul_f32 %s, %s, %s' % (v(Y + i, 2), v(Y + i, 2), v(GA + i, 2)))
    for d in range(8):
        A('v_cvt_pk_bf16_f32 %s, %s, %s' % (v(P + d), v(Y + 2 * d), v(Y + 2 * d + 1)))
    for d in range(8):
        unpack(A, Y + 2 * d, Y + 2 * d + 1, P + d)
    XF = 144
    for d in range(8):
        unpack(A, XF + 2 * d, XF + 2 * d + 1, XR + d)
    for i in range(0, 16, 2):
        A('v_pk_add_f32 %s, %s, %s' % (v(Y + i, 2), v(Y + i, 2), v(XF + i, 2)))
    for d in range(8):
        A('v_cvt_pk_bf16_f32 %s, %s, %s' % (v(P + d), v(Y + 2 * d), v(Y + 2 * d + 1)))
    for cf in range(4):
        A('buffer_store_dwordx2 %s, v18, s[28:31], s52 offen offset:%d' % (v(P + cf * 2, 2), cf * 32))
    pf.finish()
    A.label('K4_END')
    A('s_endpgm')
    return dict(name=name, grid=256, block=256, lds=K4_LDS, vgpr=192 + 64, sgpr=102 if PROF else 56, accum=192)
```
